```python
import torch

def _softmax(x, axis=-1):
    return torch.softmax(x, dim=axis)

def _gelu(x):
    return torch.nn.functional.gelu(x, approximate='tanh')

def _silu(x):
    return torch.nn.functional.silu(x)

def _sigmoid(x):
    return torch.sigmoid(x)

def _layernorm(x, axis=-1, eps=1e-05):
    m = x.mean(dim=axis, keepdim=True)
    v = x.var(dim=axis, keepdim=True, unbiased=False)
    return (x - m) / torch.sqrt(v + eps)

def _scatter_add(tgt, idx, src, axis=0):
    return tgt.clone().index_add_(axis, idx, src)

def _segment_sum(src, seg, n):
    out = torch.zeros((n,) + src.shape[1:], dtype=src.dtype)
    return out.index_add_(0, seg, src)

def _pad(x, pw):
    flat = tuple((v for pair in reversed(pw) for v in pair))
    return torch.nn.functional.pad(x, flat)
kernel_name = 'concat_heads__memory_aug_recurrent_mem_tr__sliding_block__prompt'

def setup_inputs():

    _w = lambda a: (lambda t: t.to(torch.bfloat16) if t.is_floating_point() else t)(torch.as_tensor(a))

    def _A_setup():
        B, S, Dm = (1, 2048, 640)
        H, Dh = (32, 128)
        M, seg = (8, 32)
        seg = min(seg, S)
        S = S // seg * seg
        return {'x': _w((lambda *s: torch.randn(*s, dtype=torch.bfloat16) * 0.05)(B, S, Dm)), 'mem0': _w((lambda *s: torch.randn(*s, dtype=torch.bfloat16) * 1.6)(B, M, Dm)), 'Wq': _w((lambda *s: torch.randn(*s, dtype=torch.bfloat16) * 0.8)(Dm, H, Dh) * Dm ** (-0.5)), 'Wk': _w((lambda *s: torch.randn(*s, dtype=torch.bfloat16) * 0.8)(Dm, H, Dh) * Dm ** (-0.5)), 'Wv': _w((lambda *s: torch.randn(*s, dtype=torch.bfloat16) * 1.6)(Dm, H, Dh) * Dm ** (-0.5)), 'Wo': _w((lambda *s: torch.randn(*s, dtype=torch.bfloat16) * 1.6)(H, Dh, Dm) * (H * Dh) ** (-0.5)), 'seg_len': seg}
    _A_in = _A_setup()

    def _B_setup():
        B, S, D = (1, 2048, 640)
        return {'x': _w((lambda *s: torch.randn(*s, dtype=torch.bfloat16) * 0.2)(B, S, D)), 'wqkv': _w((lambda *s: torch.randn(*s, dtype=torch.bfloat16) * 0.2)(D, 3 * D)), 'wo': _w((lambda *s: torch.randn(*s, dtype=torch.bfloat16) * 0.05)(D, D))}
    _B_in = _B_setup()
    return {'A_x': _A_in['x'], 'A_mem0': _A_in['mem0'], 'A_Wq': _A_in['Wq'], 'A_Wk': _A_in['Wk'], 'A_Wv': _A_in['Wv'], 'A_Wo': _A_in['Wo'], 'A_seg_len': _A_in['seg_len'], 'B_x': _B_in['x'], 'B_wqkv': _B_in['wqkv'], 'B_wo': _B_in['wo']}

def reference(A_x, A_mem0, A_Wq, A_Wk, A_Wv, A_Wo, A_seg_len, B_x, B_wqkv, B_wo):

    def _A_ref(x, mem0, Wq, Wk, Wv, Wo, seg_len):
        B, S, Dm = x.shape
        H, Dh = (Wq.shape[1], Wq.shape[2])
        M = mem0.shape[1]
        scale = Dh ** (-0.5)
        n_seg = S // seg_len
        L = M + seg_len
        idx = torch.arange(L)
        mask = (idx[:, None] < M) | (idx[:, None] >= idx[None, :])
        mem = mem0
        outs = []
        for s in range(n_seg):
            xs = x[:, s * seg_len:(s + 1) * seg_len, :].clone()
            h = torch.concatenate([mem, xs], axis=1)
            q = torch.einsum('btd,dhe->bhte', h, Wq)
            k = torch.einsum('btd,dhe->bhte', h, Wk)
            v = torch.einsum('btd,dhe->bhte', h, Wv)
            scores = torch.einsum('bhqe,bhke->bhqk', q, k) * scale
            scores = torch.where(mask[None, None], scores, -1000000000.0)
            p = _softmax(scores, axis=-1)
            o = torch.einsum('bhqk,bhke->bhqe', p, v)
            o = torch.einsum('bhte,hed->btd', o, Wo)
            mem = o[:, :M, :].clone()
            outs.append(o[:, M:, :])
        return torch.concatenate(outs, axis=1)

    def _B_ref(x, wqkv, wo):
        B, S, D = x.shape
        H = 32
        Dh = D // H
        W = 256
        qkv = (lambda x, *d: x.permute(*d))((x @ wqkv).reshape(B, S, 3, H, Dh), 2, 0, 3, 1, 4)
        q, k, v = (qkv[0], qkv[1], qkv[2])
        scores = torch.einsum('bhqd,bhkd->bhqk', q, k) * Dh ** (-0.5)
        idx = torch.arange(S)
        mask = (idx[:, None] - idx[None, :] >= 0) & (idx[:, None] - idx[None, :] < W)
        scores = torch.where(mask[None, None], scores, -1000000000.0)
        p = _softmax(scores, axis=-1)
        o = torch.einsum('bhqk,bhkd->bhqd', p, v)
        return (lambda x, *d: x.permute(*d))(o, 0, 2, 1, 3).reshape(B, S, D) @ wo
    a = _A_ref(A_x, A_mem0, A_Wq, A_Wk, A_Wv, A_Wo, A_seg_len)
    b = _B_ref(B_x, B_wqkv, B_wo)
    return torch.concatenate([a, b], axis=-1)
```

```python
import re

TRANS = ("v_exp_", "v_log_", "v_rcp_", "v_rsq_", "v_sqrt_", "v_sin_", "v_cos_")


def vr(n, cnt=1):
    return f"v{n}" if cnt == 1 else f"v[{n}:{n + cnt - 1}]"


def ar(n, cnt=1):
    return f"a{n}" if cnt == 1 else f"a[{n}:{n + cnt - 1}]"


def sr(n, cnt=1):
    return f"s{n}" if cnt == 1 else f"s[{n}:{n + cnt - 1}]"


def ur(n, cnt=1):
    if n < 256:
        assert n + cnt <= 256
        return vr(n, cnt)
    return ar(n - 256, cnt)


_REG = re.compile(r"^(-|\|)?(abs\()?([vas])(\d+|\[(\d+):(\d+)\])\)?\|?$")


def regs_of(op):
    op = op.strip()
    if op == "vcc":
        return {"vcc_lo", "vcc_hi"}
    if op in ("vcc_lo", "vcc_hi", "m0", "exec_lo", "exec_hi"):
        return {op}
    if op == "exec":
        return {"exec_lo", "exec_hi"}
    m = _REG.match(op)
    if not m:
        return set()
    k = m.group(3)
    if m.group(5) is not None:
        return {f"{k}{i}" for i in range(int(m.group(5)), int(m.group(6)) + 1)}
    return {f"{k}{int(m.group(4))}"}


def is_vec(r):
    return r[0] in "va" and r[1].isdigit()


class Ins:
    def __init__(self, text):
        self.text = text
        body = text.split(";")[0].strip()
        parts = body.split(None, 1)
        self.mn = parts[0]
        rest = parts[1] if len(parts) > 1 else ""
        ops = [o.strip() for o in re.split(r",(?![^\[]*\])", rest)] if rest else []
        self.mods = ""
        if ops:
            last = ops[-1].split(None, 1)
            ops[-1] = last[0]
            self.mods = last[1] if len(last) > 1 else ""
        self.ops = ops
        mn = self.mn
        self.w = set()
        self.r = set()
        self.kind = "other"
        self.passes = 0
        self.srcA = self.srcB = self.srcC = set()
        self.data = set()
        R = [regs_of(o) for o in ops]
        allr = lambda xs: set().union(*xs) if xs else set()
        if mn.startswith("v_mfma") or mn.startswith("v_smfmac"):
            self.kind = "mfma"
            self.passes = 8 if "32x32" in mn else 4
            self.w = R[0]
            self.srcA, self.srcB = R[1], R[2]
            if mn.startswith("v_smfmac"):
                self.srcC = R[0]
                self.srcB = R[2] | R[3]
            else:
                self.srcC = R[3]
            self.r = self.srcA | self.srcB | self.srcC
        elif mn.startswith("v_"):
            self.kind = "valu"
            if mn.startswith("v_nop"):
                pass
            elif mn.startswith("v_permlane") or mn.startswith("v_swap"):
                self.w = R[0] | R[1]
                self.r = R[0] | R[1]
            elif re.match(r"v_(add|sub|subrev|addc|subb|subbrev)_co_", mn) or mn.startswith("v_mad_u64") or mn.startswith("v_div_scale"):
                self.w = R[0] | R[1]
                self.r = allr(R[2:])
            else:
                self.w = R[0]
                self.r = allr(R[1:])
                if mn.startswith(("v_fmac", "v_mac", "v_dot2c", "v_writelane", "v_pk_fmac")) or "_dpp" in mn or "_sdwa" in mn:
                    self.r |= R[0]
                if mn.startswith("v_cmpx"):
                    self.w |= {"exec_lo", "exec_hi"}
        elif mn.startswith("ds_"):
            self.kind = "ds"
            if mn.startswith(("ds_read", "ds_bpermute", "ds_permute", "ds_swizzle")) or "_rtn" in mn:
                self.w = R[0]
                self.r = allr(R[1:])
            else:
                self.r = allr(R)
        elif mn.startswith(("buffer_", "global_")):
            self.kind = "vmem"
            mods = self.mods.split()
            if mn.startswith("buffer_load") and "lds" in mods or mn.startswith("global_load_lds"):
                self.r = allr(R) | {"m0"}
            elif "_load" in mn:
                self.w = R[0]
                self.r = allr(R[1:])
            elif mn.startswith("buffer_atomic"):
                self.r = allr(R)
                if "sc0" in mods:
                    self.w = R[0]
            elif mn.startswith("global_atomic"):
                if "sc0" in mods:
                    self.w = R[0]
                    self.r = allr(R[1:])
                else:
                    self.r = allr(R)
            else:
                self.r = allr(R)
                if mn.endswith(("x3", "x4")):
                    self.data = R[0] if mn.startswith("buffer_") else R[1]
        elif mn.startswith("s_"):
            self.kind = "salu"
            if mn.startswith(("s_cmp", "s_cbranch", "s_branch", "s_waitcnt", "s_nop", "s_barrier", "s_endpgm", "s_sleep", "s_setprio", "s_bitcmp", "s_setreg")):
                self.r = allr(R)
            else:
                self.w = R[0] if R else set()
                self.r = allr(R[1:])
                if "saveexec" in mn:
                    self.w = self.w | {"exec_lo", "exec_hi"}
        self.is_dpp = "_dpp" in mn or "row_" in self.mods or "quad_perm" in self.mods
        self.is_trans = mn.startswith(TRANS)

    def states(self):
        if self.mn == "s_nop":
            return int(self.ops[0], 0) + 1
        return 1


def required(p, c):
    need = 0
    if p.kind == "valu":
        pv = {x for x in p.w if is_vec(x)}
        ps = p.w - pv
        if c.kind == "mfma" and pv & c.r:
            need = max(need, 2)
        if c.kind == "valu":
            if c.is_dpp and pv & c.r:
                need = max(need, 2)
            if c.mn.startswith("v_permlane") and pv & c.r:
                need = max(need, 2)
            if c.mn.startswith(("v_readlane", "v_readfirstlane")) and pv & c.r:
                need = max(need, 1)
            if p.is_trans and not c.is_trans and pv & c.r:
                need = max(need, 1)
            if ("op_sel" in p.mods or "_sdwa" in p.mn) and pv & (c.r | c.w):
                need = max(need, 1)
            if ps & c.r:
                need = max(need, 4 if c.mn.startswith(("v_readlane", "v_writelane", "v_div_fmas")) else 2)
            if "exec_lo" in ps:
                need = max(need, 5)
        if c.kind == "mfma" and "exec_lo" in ps:
            need = max(need, 4)
        if c.kind == "vmem" and ps & c.r:
            need = max(need, 5)
    if p.kind == "mfma":
        big = 12 if p.passes == 8 else 8
        if c.kind == "mfma":
            if p.w & (c.srcA | c.srcB):
                need = max(need, big)
            if p.w & c.srcC:
                if not (p.w == c.srcC and p.passes == c.passes):
                    need = max(need, big - 2)
            elif p.w & c.w and not (p.w == c.w and p.passes == c.passes):
                need = max(need, big - 2)
        elif c.kind in ("valu", "ds", "vmem"):
            if p.w & (c.r | c.w):
                need = max(need, big)
            if c.kind == "valu" and p.srcC & c.w:
                need = max(need, p.passes - 1)
    if p.kind == "vmem" and p.data and p.data & c.w:
        need = max(need, 2 if c.kind in ("valu", "mfma") else 1)
    if p.kind == "salu" and "m0" in p.w and "m0" in c.r and c.kind in ("vmem", "ds"):
        need = max(need, 1)
    return need


class Asm:
    def __init__(self):
        self.items = []
        self.uid = 0

    def __call__(self, text):
        for ln in text.split("\n"):
            s = ln.strip()
            if not s:
                continue
            if s.startswith((";", ".", "//")) and not s.endswith(":"):
                self.items.append(("t", s))
            elif s.endswith(":"):
                self.items.append(("l", s[:-1]))
            else:
                self.items.append(("i", Ins(s)))

    def label(self, base):
        self.uid += 1
        return f"L_{base}_{self.uid}"

    def fix_hazards(self, verbose=False):
        total = 0
        for _ in range(4):
            items = self.items
            lab = {v: i for i, (k, v) in enumerate(items) if k == "l"}
            jumps = {}
            for i, (k, v) in enumerate(items):
                if k == "i" and v.mn.startswith(("s_cbranch", "s_branch")):
                    jumps.setdefault(lab[v.ops[0]], []).append(i)
            pad = {}

            def back(c, pos, dist, seen):
                short = 0
                stack = [(pos, dist)]
                while stack:
                    q, d = stack.pop()
                    preds = []
                    if q in jumps:
                        preds += jumps[q]
                    if q > 0:
                        k, v = items[q - 1]
                        if not (k == "i" and v.mn in ("s_branch", "s_endpgm", "s_setpc_b64")):
                            preds.append(q - 1)
                    for j in preds:
                        if seen.get(j, 99) <= d:
                            continue
                        seen[j] = d
                        k, v = items[j]
                        if k != "i":
                            stack.append((j, d))
                            continue
                        short = max(short, required(v, c) - d)
                        nd = d + v.states() + pad.get(j, 0)
                        if nd < 12:
                            stack.append((j, nd))
                return short

            for i, (k, v) in enumerate(items):
                if k == "i" and v.kind in ("valu", "mfma", "ds", "vmem"):
                    s = back(v, i, 0, {})
                    if s > 0:
                        pad[i] = s
            if not pad:
                break
            out = []
            for i, it in enumerate(items):
                if i in pad:
                    if verbose:
                        print(f"hazard: s_nop {pad[i]-1} before {it[1].text}")
                    out.append(("i", Ins(f"s_nop {pad[i] - 1} ; hz")))
                    total += 1
                out.append(it)
            self.items = out
        return total

    def text(self):
        out = []
        for k, v in self.items:
            if k == "i":
                out.append("  " + v.text)
            elif k == "l":
                out.append(v + ":")
            else:
                out.append(v)
        return "\n".join(out) + "\n"


def estimate(items, lds_lat=56, verbose=False):
    t = 0
    mpipe = 0
    vfree = 0
    mdone = 0
    vdone = 0
    vccrdy = 0
    lds = []
    lds_last = 0
    out = []
    for k, v in items:
        if k != "i":
            if k == "t":
                out.append((t, v))
            continue
        cost = 4
        if v.kind == "mfma":
            big = v.passes == 8
            t = max(t, mpipe, vfree)
            mpipe = t + (32 if big else 16)
            vfree = t + (12 if v.mn.startswith("v_smfmac") else 8)
            mdone = t + (44 if big else 28)
        elif v.kind == "valu":
            t = max(t, vfree)
            if v.mn.startswith("v_pk_"):
                t = max(t, mdone)
            if v.is_trans or v.mn.startswith("v_permlane"):
                cost = 8
            vfree = t + cost
            vdone = t + cost + 8
            if "vcc_lo" in v.w:
                vccrdy = t + 20
        elif v.kind in ("ds", "vmem"):
            t = max(t, vdone)
            if v.kind == "ds":
                occ = 16 if "b128" in v.mn else 8
                if "write" in v.mn:
                    occ = 48 if "b128" in v.mn else 24 if ("b64" in v.mn or "write2" in v.mn) else 16
                lds_last = max(t + lds_lat - 16 + occ, lds_last + occ)
                lds.append(lds_last)
        elif v.mn == "s_waitcnt":
            m = re.search(r"lgkmcnt\((\d+)\)", v.text)
            if m:
                n = int(m.group(1))
                while len(lds) > n:
                    t = max(t, lds.pop(0))
        elif v.mn == "s_nop":
            cost = 4 * v.states()
        elif v.mn.startswith("s_cbranch"):
            if "vcc" in v.mn:
                t = max(t, vccrdy)
            cost = 12
        elif v.mn == "s_barrier":
            cost = 8
        if verbose:
            print(f"{t:6d} {v.text}")
        t += cost
    return t, out
```

```python
import math
import struct
from asmlib import vr, ur, sr
from layout import *

N_LDSU = 17
LDS_WAVE_W = N_LDSU * 2048
LDS_MEM = 0
LDS_KX = LDS_MEM + 10240
LDS_QK = LDS_KX + 8192
LDS_JUNK = LDS_QK + 8 * 544
LDS_W = 24576
assert LDS_JUNK + 256 <= LDS_W and LDS_W + 4 * LDS_WAVE_W <= 163840
OOB = 0x80000000

S_WS = 4
S_A, S_H, S_W, S_STEP, S_SPIN = 8, 9, 10, 11, 12
S_PUB, S_INB = 13, 15
S_MLR, S_MLW, S_MRR, S_MRW = 16, 17, 18, 19
S_KX, S_VX, S_KVM = 20, 21, 22
S_RED = 23
S_C = 24
S_SENT = 25
S_B0 = 26
S_SEL = 28
S_T0, S_T1, S_T2, S_T3 = 36, 37, 38, 39
S_TA = 40
S_MLB = 42
S_DLT = 43
S_STAMP = 44
S_KXM = 50
S_MEMM = 51
S_RS0, S_RS1, S_RS2 = 52, 53, 54
S_W1280 = 55
S_W4096 = 56
S_ONES = 57
S_LIM = 58
S_3F80 = 59
S_REDM = 60
S_RHO = 61
S_LIM2 = 62
S_KVT = 63
S_CNT = 64
S_CL, S_CR = 65, 66
S_SENT2 = 68
S_KVX = 70
S_W2M = 72
S_KVS, S_READY, S_PRG = 74, 75, 76

V_L16, V_IDX, V_QW, V_QR, V_KR, V_OW, V_PUB, V_RST = 0, 1, 2, 3, 4, 5, 6, 7
V_KXS, V_VXS, V_KVM, V_VW, V_WL, V_MW = 8, 9, 10, 11, 12, 13
V_UP = V_L16
ACC = {"q0": 16, "q1": 20, "k0": 24, "k1": 28, "v0": 32, "v1": 36}
F = [40, 44, 48]
U = [52, 60]
VX = 68
MATS = ["q0", "q1", "k0", "k1", "v0", "v1"]
WS = sr(S_WS, 4)
ROR8 = "row_ror:8 row_mask:0xf bank_mask:0xf"


def unit_index(u):
    if u[0] == "o":
        return 60 + 2 * u[1] + u[2]
    return MATS.index(u[0]) * 10 + u[1]


ALL_UNITS = [(m, c) for m in MATS for c in range(10)] + [("o", t, mo) for t in range(5) for mo in range(2)]
LDS_UNITS = [(m, c) for c in range(4) for m in ("v0", "v1")] + [("o", t, mo) for t in (0, 1, 3, 4) for mo in range(2)] + [("v0", 4)]
REG_UNITS = [u for u in ALL_UNITS if u not in LDS_UNITS]
assert len(LDS_UNITS) == N_LDSU and len(REG_UNITS) == 53
REG_OF = {u: 88 + 8 * i for i, u in enumerate(REG_UNITS)}
LDS_OF = {u: 2048 * i for i, u in enumerate(LDS_UNITS)}


def fbits(x):
    return struct.unpack("<I", struct.pack("<f", x))[0]


class Chain:
    def __init__(self, k, stamps=None, nsteps=64, **opt):
        self.opt = opt
        self.k = k
        self.stamps = stamps
        self.nsteps = nsteps
        self.names = []

    def stamp(self, name):
        self.names.append(name)
        self.k(f"; @{name}")
        if not self.stamps or name not in self.stamps:
            return
        self.k(f"s_memtime {sr(S_STAMP + 2 * self.stamps.index(name), 2)}")

    def smf(self, acc, a, b):
        self.k(f"v_smfmac_f32_16x16x64_bf16 {vr(acc, 4)}, {vr(a, 4)}, {ur(b, 8)}, v{V_IDX}")

    def upart(self, dst, u, hi):
        self.k(f"ds_read_b128 {vr(dst + 4 * hi, 4)}, v{V_WL} offset:{LDS_OF[u] + 1024 * hi}")

    def lds_unit(self, dst, u):
        self.upart(dst, u, 0)
        self.upart(dst, u, 1)

    def frag(self, dst, c):
        self.k(f"ds_read_b128 {vr(dst, 4)}, v{V_UP} offset:{1024 * c}")

    def kxpart(self, dst, tau, m):
        off = LDS_KX - LDS_MEM + (tau >> 1) * 4096 + (tau & 1) * 1024 + 2048 * m
        self.k(f"ds_read_b128 {vr(dst + 4 * m, 4)}, v{V_UP} offset:{off}")

    def mem_dma(self, remote):
        k = self.k
        so = S_MRR if remote else S_MLR
        if remote:
            k(f"s_add_u32 m0, s{S_W1280}, 5120")
        else:
            k(f"s_mov_b32 m0, s{S_W1280}")
        k(f"buffer_load_dwordx4 v{V_L16}, {WS}, s{so} offen sc1 lds")
        k(f"buffer_load_dword v15, {WS}, s{so} offen offset:1024 sc1 lds")

    def own4(self, remote):
        self.k(f"ds_read_b128 v[68:71], v{V_MW} offset:{5120 * remote}")

    def own1(self, remote):
        self.k(f"ds_read_b32 v72, v14 offset:{5120 * remote}")

    def kx_all(self):
        k = self.k
        for tau in range(4):
            k(f"s_mov_b32 m0, {LDS_KX + (tau >> 1) * 4096 + (tau & 1) * 1024 - 128 * tau}")
            k(f"buffer_load_dwordx4 v{V_KXS}, {WS}, s{S_KX} offen offset:{128 * tau} sc1 lds")
            k(f"buffer_load_dwordx4 v{V_KXS}, {WS}, s{S_KX} offen offset:{128 * tau + 2048} sc1 lds")

    def chk5(self, r4, r1, t):
        c = "f" if self.opt.get("free") else "u"
        return [f"v_fma_f32 v{t}, v{r4}, v{r4 + 1}, v{r4 + 2}",
                f"v_add_f32 v{t}, v{t}, v{r4 + 3}",
                f"v_cmp_{c}_f32 vcc, v{t}, v{r1}"]

    def exact_check(self, regs):
        k = self.k
        k(f"s_mov_b64 {sr(S_TA, 2)}, 0")
        for r in regs:
            k(f"v_cmp_eq_u32 vcc, s{S_SENT}, v{r}")
            k(f"s_or_b64 {sr(S_TA, 2)}, {sr(S_TA, 2)}, vcc")

    def spin(self):
        self.k(f"s_sub_u32 s{S_SPIN}, s{S_SPIN}, 1")
        self.k(f"s_cbranch_scc1 L_cabort")

    def consts(self):
        k = self.k
        T = 20
        g, c, t0, t1, t2 = T, T + 1, T + 2, T + 3, T + 4
        k(f"v_lshrrev_b32 v{g}, 4, v0")
        k(f"v_and_b32 v{c}, 15, v0")
        k(f"v_and_b32 v{t0}, 2, v{c}")
        k(f"v_cmp_ne_u32 vcc, 0, v{t0}")
        k(f"v_mov_b32 v{t1}, 0x44444444")
        k(f"v_mov_b32 v{t2}, 0xeeeeeeee")
        k(f"v_cndmask_b32 v{V_IDX}, v{t1}, v{t2}, vcc")
        k(f"s_lshl_b32 s{S_T0}, s{S_W}, 6")
        k(f"s_add_u32 s{S_T0}, s{S_T0}, {LDS_QK}")
        k(f"v_mul_u32_u24 v{t0}, 1088, v{g}")
        k(f"v_lshl_add_u32 v{t0}, v{c}, 2, v{t0}")
        k(f"v_add_u32 v{V_QW}, s{S_T0}, v{t0}")
        k(f"s_lshl_b32 s{S_T0}, s{S_W}, 9")
        k(f"s_add_u32 s{S_T0}, s{S_T0}, {LDS_MEM + 2048}")
        k(f"v_lshlrev_b32 v{t0}, 2, v{g}")
        k(f"v_lshl_add_u32 v{t0}, v{c}, 4, v{t0}")
        k(f"v_add_u32 v{V_VW}, s{S_T0}, v{t0}")
        k(f"v_and_b32 v{t0}, 7, v{c}")
        k(f"v_mul_u32_u24 v{t0}, 544, v{t0}")
        k(f"v_lshlrev_b32 v{t1}, 1, v{c}")
        k(f"v_xor_b32 v{t1}, v{t1}, v{c}")
        k(f"v_and_b32 v{t1}, 8, v{t1}")
        k(f"v_lshl_add_u32 v{t0}, v{t1}, 4, v{t0}")
        k(f"v_lshl_add_u32 v{t0}, v{g}, 4, v{t0}")
        k(f"v_add_u32 v{V_QR}, {LDS_QK}, v{t0}")
        k(f"v_lshrrev_b32 v{t2}, 2, v{c}")
        k(f"v_lshlrev_b32 v{t2}, 1, v{t2}")
        k(f"v_and_b32 v{t1}, 1, v{c}")
        k(f"v_or_b32 v{t2}, v{t2}, v{t1}")
        k(f"v_and_b32 v{t1}, 2, v{c}")
        k(f"v_mul_u32_u24 v{t0}, 544, v{t2}")
        k(f"v_lshl_add_u32 v{t0}, v{t1}, 6, v{t0}")
        k(f"v_lshl_add_u32 v{t0}, v{g}, 4, v{t0}")
        k(f"v_add_u32 v{V_KR}, {LDS_QK + 256}, v{t0}")
        k(f"v_lshlrev_b32 v{t0}, 11, v{t1}")
        k(f"v_lshl_add_u32 v{t0}, v{g}, 9, v{t0}")
        k(f"v_lshl_add_u32 v{V_KXS}, v{t2}, 4, v{t0}")
        k(f"s_and_b32 s{S_T0}, s{S_W}, 1")
        k(f"s_lshl_b32 s{S_T0}, s{S_T0}, 6")
        k(f"v_add_u32 v{t2}, s{S_T0}, v0")
        k(f"v_and_b32 v{t0}, 7, v{t2}")
        k(f"v_mul_u32_u24 v{t0}, 544, v{t0}")
        k(f"v_lshrrev_b32 v{t1}, 3, v{t2}")
        k(f"v_lshl_add_u32 v{t0}, v{t1}, 4, v{t0}")
        k(f"v_add_u32 v{t0}, {LDS_QK + 256}, v{t0}")
        k(f"v_lshlrev_b32 v{t1}, 4, v{t2}")
        k(f"v_add_u32 v{t1}, {LDS_MEM + 2048}, v{t1}")
        k(f"s_cmp_eq_u32 s{S_A}, 0")
        k(f"s_cselect_b64 vcc, -1, 0")
        k(f"v_cndmask_b32 v{V_KVM}, v{t1}, v{t0}, vcc")
        k(f"s_lshr_b32 s{S_T0}, s{S_W}, 1")
        k(f"s_lshl_b32 s{S_T0}, s{S_T0}, 10")
        k(f"s_and_b32 s{S_T1}, s{S_W}, 1")
        k(f"s_lshl_b32 s{S_T1}, s{S_T1}, 5")
        k(f"s_add_u32 s{S_T0}, s{S_T0}, s{S_T1}")
        k(f"s_add_u32 s{S_T0}, s{S_T0}, {LDS_MEM}")
        k(f"v_and_b32 v{t0}, 6, v{c}")
        k(f"v_lshlrev_b32 v{t0}, 5, v{t0}")
        k(f"v_and_b32 v{t1}, 1, v{c}")
        k(f"v_lshl_add_u32 v{t0}, v{t1}, 4, v{t0}")
        k(f"v_lshl_add_u32 v{t0}, v{g}, 8, v{t0}")
        k(f"v_add_u32 v{V_OW}, s{S_T0}, v{t0}")
        k(f"v_lshlrev_b32 v{t0}, 11, v{g}")
        k(f"v_lshl_add_u32 v{V_PUB}, v{c}, 2, v{t0}")
        k(f"v_and_b32 v{t0}, 2, v{c}")
        k(f"v_lshlrev_b32 v{t0}, 4, v{t0}")
        k(f"v_lshl_add_u32 v{t0}, v{g}, 4, v{t0}")
        k(f"v_and_b32 v{t1}, 1, v{c}")
        k(f"v_lshl_add_u32 v{t0}, v{t1}, 3, v{t0}")
        k(f"v_and_b32 v{t1}, {0x2d if self.opt.get('x4') else 0x2c}, v0")
        k(f"v_cmp_eq_u32 vcc, 0, v{t1}")
        k(f"v_mov_b32 v{t1}, 0x40000000")
        k(f"v_cndmask_b32 v{V_RST}, v{t1}, v{t0}, vcc")
        k(f"v_and_b32 v{t0}, 1, v{g}")
        k(f"v_lshlrev_b32 v{t0}, 10, v{t0}")
        k(f"v_and_b32 v{t1}, 2, v{g}")
        k(f"v_lshl_add_u32 v{t0}, v{t1}, 8, v{t0}")
        k(f"v_lshl_add_u32 v{t0}, v{c}, 4, v{t0}")
        k(f"s_lshl_b32 s{S_T0}, s{S_W}, 11")
        k(f"s_add_u32 s{S_T0}, s{S_T0}, 8192")
        k(f"v_add_u32 v{V_VXS}, s{S_T0}, v{t0}")
        k(f"s_lshl_b32 s{S_W4096}, s{S_W}, 12")
        for t in range(4):
            m = 0x11111111 << t
            k(f"s_mov_b32 s{S_SEL + 2 * t}, {m:#x}")
            k(f"s_mov_b32 s{S_SEL + 2 * t + 1}, {m:#x}")
        k(f"v_lshlrev_b32 v{V_L16}, 4, v0")
        k(f"s_mul_i32 s{S_T0}, s{S_W}, {LDS_WAVE_W}")
        k(f"s_add_u32 s{S_T0}, s{S_T0}, {LDS_W}")
        k(f"v_add_u32 v{V_WL}, s{S_T0}, v{V_L16}")
        k(f"s_mov_b32 s{S_B0}, 0xf00ff00f")
        k(f"s_mov_b32 s{S_B0 + 1}, 0xf00ff00f")
        k(f"s_mov_b32 s{S_C}, {fbits(math.log2(math.e) / math.sqrt(128.0)):#x}")
        k(f"s_mov_b32 s{S_SENT}, {SENT:#x}")
        k(f"s_mov_b32 s{S_SENT2}, {SENT:#x}")
        k(f"s_mov_b32 s{S_SENT2 + 1}, {SENT:#x}")
        k(f"s_mov_b32 s{S_ONES}, 0x3f803f80")
        k(f"s_mov_b32 s{S_3F80}, 0x3f80")
        lim = int(self.opt.get('lim', 40))
        k(f"s_mov_b32 s{S_LIM}, {(127 - lim) << 23:#x}")
        k(f"s_mov_b32 s{S_LIM2}, {(2 * lim) << 23:#x}")
        k(f"s_lshl_b32 s{S_T2}, s{S_H}, 1")
        k(f"s_add_u32 s{S_T2}, s{S_T2}, s{S_W}")
        k(f"s_add_u32 s{S_T2}, s{S_T2}, 16")
        k(f"s_cmp_lt_u32 s{S_W}, 2")
        k(f"s_cselect_b32 s{S_RHO}, s{S_T2}, s{S_H}")
        k(f"s_cselect_b32 s{S_RED}, 1, 0")
        k(f"s_lshl_b32 s{S_T0}, s{S_W}, 5")
        k(f"s_add_u32 s{S_T0}, s{S_T0}, s{S_H}")
        k(f"s_cmp_lt_u32 s{S_T0}, 80")
        k(f"s_cselect_b32 s{S_RED}, 1, 0")
        k(f"s_cselect_b32 s{S_REDM}, 0, {OOB:#x}")
        k(f"s_mul_i32 s{S_T0}, s{S_A}, {2 * INBOX_SLOT}")
        k(f"s_add_u32 s{S_T0}, s{S_T0}, {WS_INBOX}")
        k(f"s_lshl_b32 s{S_T1}, s{S_RHO}, 11")
        k(f"s_add_u32 s{S_INB}, s{S_T0}, s{S_T1}")
        k(f"s_mov_b32 s{S_RS0}, {OOB:#x}")
        k(f"s_mov_b32 s{S_KVT}, {OOB:#x}")
        k(f"s_mov_b32 s{S_CNT}, 0")
        k(f"s_mov_b32 s{S_CL}, 0")
        k(f"s_mov_b32 s{S_CR}, 0")
        k(f"s_mov_b32 s{S_RS2}, {OOB:#x}")
        k(f"s_lshl_b32 s{S_T1}, s{S_H}, 6")
        k(f"s_add_u32 s{S_T0}, s{S_T0}, s{S_T1}")
        k(f"s_lshl_b32 s{S_T1}, s{S_W}, 13")
        k(f"s_add_u32 s{S_PUB}, s{S_T0}, s{S_T1}")
        k(f"s_lshl_b32 s{S_T0}, s{S_RHO}, 6")
        k(f"v_add_u32 v{V_RST}, s{S_T0}, v{V_RST}")
        k(f"s_lshl_b32 s{S_T0}, s{S_A}, 15")
        k(f"s_add_u32 s{S_MLB}, s{S_T0}, {WS_MEML}")
        k(f"s_lshl_b32 s{S_T0}, s{S_H}, 14")
        k(f"s_add_u32 s{S_KX}, s{S_T0}, {WS_KV}")
        k(f"s_lshl_b32 s{S_T0}, s{S_H}, 11")
        k(f"s_lshl_b32 s{S_T1}, s{S_W}, 10")
        k(f"s_add_u32 s{S_T0}, s{S_T0}, s{S_T1}")
        k(f"s_mul_i32 s{S_T1}, s{S_A}, {WS_VM - WS_KM}")
        k(f"s_add_u32 s{S_T0}, s{S_T0}, s{S_T1}")
        k(f"s_add_u32 s{S_KVM}, s{S_T0}, {WS_KM - 65536}")
        k(f"s_cmp_lt_u32 s{S_W}, 2")
        k(f"s_cselect_b32 s{S_KVM}, s{S_KVM}, {OOB:#x}")
        k(f"s_cselect_b32 s{S_KVS}, 65536, 0")
        k(f"s_cselect_b64 {sr(S_KVX, 2)}, -1, 1")
        k(f"s_lshr_b32 s{S_T0}, s{S_H}, 1")
        k(f"s_lshl_b32 s{S_T0}, s{S_T0}, 7")
        k(f"s_and_b32 s{S_T1}, s{S_H}, 1")
        k(f"s_lshl_b32 s{S_T1}, s{S_T1}, 1")
        k(f"s_add_u32 s{S_T1}, s{S_T1}, s{S_A}")
        k(f"s_lshl_b32 s{S_T1}, s{S_T1}, 4")
        k(f"s_add_u32 s{S_T0}, s{S_T0}, s{S_T1}")
        k(f"s_add_u32 s{S_T0}, s{S_T0}, {FL_CHAIN}")
        k(f"s_cmp_eq_u32 s{S_W}, 2")
        k(f"s_cselect_b32 s{S_KVM}, s{S_T0}, s{S_KVM}")
        k(f"s_cselect_b64 {sr(S_W2M, 2)}, 1, 0")
        k(f"s_lshl_b32 s{S_T0}, s{S_H}, 7")
        k(f"s_add_u32 s{S_PRG}, s{S_T0}, {FL_PROG}")
        k(f"s_mov_b32 s{S_READY}, 0")
        k(f"s_lshr_b32 s{S_T0}, s{S_W}, 1")
        k(f"s_lshl_b32 s{S_T0}, s{S_T0}, 12")
        k(f"s_and_b32 s{S_T1}, s{S_W}, 1")
        k(f"s_lshl_b32 s{S_T1}, s{S_T1}, 10")
        k(f"s_add_u32 s{S_T0}, s{S_T0}, s{S_T1}")
        k(f"s_add_u32 s{S_KXM}, s{S_T0}, {LDS_KX}")
        k(f"s_mul_i32 s{S_W1280}, s{S_W}, 1280")
        k(f"v_add_u32 v{V_MW}, s{S_W1280}, v{V_L16}")
        k(f"s_add_u32 s{S_MEMM}, s{S_W1280}, {LDS_MEM + 1024}")
        k(f"s_mov_b32 s{S_DLT}, {INBOX_SLOT}")
        k(f"s_mov_b32 s{S_MLW}, s{S_MLB}")
        k(f"s_add_u32 s{S_MLR}, s{S_MLB}, s{S_W1280}")

    def remote_offsets(self, pol_sgpr):
        k = self.k
        k(f"s_lshl_b32 s{S_T0}, s{pol_sgpr}, 13")
        k(f"s_add_u32 s{S_T0}, s{S_T0}, {WS_MEMR}")
        k(f"s_lshl_b32 s{S_T1}, s{S_A}, 14")
        k(f"s_add_u32 s{S_MRW}, s{S_T0}, s{S_T1}")
        k(f"s_xor_b32 s{S_MRR}, s{S_MRW}, 0x4000")
        k(f"s_add_u32 s{S_MRR}, s{S_MRR}, s{S_W1280}")

    def probe_polarity(self, dst):
        k = self.k
        k("v_mov_b32 v40, 0")
        k("s_mov_b64 exec, 1")
        for pol in range(2):
            k(f"s_mov_b32 s{S_T2 + pol}, -1")
        for rep in range(4):
            for pol in range(2):
                k(f"s_mov_b32 s{S_T0}, {WS_MEMR + 8192 * pol + 7936}")
                k(f"s_memtime {sr(S_TA, 2)}")
                k("s_waitcnt lgkmcnt(0)")
                k(f"s_mov_b32 s{S_T1}, s{S_TA}")
                k(f"buffer_store_dword v40, v40, {WS}, s{S_T0} offen sc1")
                k("s_waitcnt vmcnt(0)")
                k(f"s_memtime {sr(S_TA, 2)}")
                k("s_waitcnt lgkmcnt(0)")
                k(f"s_sub_u32 s{S_T1}, s{S_TA}, s{S_T1}")
                k(f"s_min_u32 s{S_T2 + pol}, s{S_T2 + pol}, s{S_T1}")
        k("s_mov_b64 exec, -1")
        k(f"s_cmp_lt_u32 s{S_T3}, s{S_T2}")
        k(f"s_cselect_b32 s{dst}, 1, 0")

    def piece_store(self, lo, so, st):
        if self.opt.get("x4"):
            self.k(f"buffer_store_dwordx4 {vr(lo, 4)}, v{V_RST}, {WS}, s{so} offen{st}")
        else:
            self.k(f"buffer_store_dwordx2 {vr(lo, 2)}, v{V_RST}, {WS}, s{so} offen{st}")

    def widen(self, lo):
        if self.opt.get("x4"):
            self.k(f"v_mov_b32_dpp v{lo + 2}, v{lo} quad_perm:[1,1,3,3] row_mask:0xf bank_mask:0xf")
            self.k(f"v_mov_b32_dpp v{lo + 3}, v{lo + 1} quad_perm:[1,1,3,3] row_mask:0xf bank_mask:0xf")

    def init_sentinels(self, st):
        k = self.k
        skip = k.label("nosent")
        k(f"s_cmp_eq_u32 s{S_RED}, 0")
        k(f"s_cbranch_scc1 {skip}")
        for i in range(4):
            k(f"v_mov_b32 v{40 + i}, s{S_SENT}")
        for slot in range(2):
            k(f"s_add_u32 s{S_T0}, s{S_INB}, {slot * INBOX_SLOT}")
            for ld in range(2):
                k(f"buffer_store_dwordx4 v[40:43], v{V_L16}, {WS}, s{S_T0} offen offset:{1024 * ld}{st}")
        for slot in range(4):
            k(f"s_add_u32 s{S_T0}, s{S_MLB}, {slot * 8192}")
            self.piece_store(40, S_T0, st)
        k(f"v_lshlrev_b32 v44, 11, v{V_L16}")
        k(f"s_lshl_b32 s{S_T0}, s{S_A}, 14")
        k(f"s_add_u32 s{S_T0}, s{S_T0}, {WS_MEMR}")
        k(f"s_lshl_b32 s{S_T1}, s{S_RHO}, 6")
        k(f"s_add_u32 s{S_T0}, s{S_T0}, s{S_T1}")
        for pol in range(2):
            for q in range(4):
                k(f"buffer_store_dwordx4 v[40:43], v44, {WS}, s{S_T0} offen offset:{16 * q} sc1")
            k(f"s_add_u32 s{S_T0}, s{S_T0}, 8192")
        k(f"{skip}:")

    def pre_step(self, kvm=True):
        k = self.k
        self.lds_unit(U[0], ("v0", 0))
        self.lds_unit(U[1], ("v1", 0))
        for r in range(16, 40, 2):
            k(f"v_mov_b64 {vr(r, 2)}, 0")

    def delay(self, n):
        while n > 0:
            m = min(n // 4, 16)
            if m <= 0:
                break
            self.k(f"s_nop {m - 1}")
            n -= 4 * m

    def seldom(self, back, regs):
        k = self.k
        go = k.label("go")
        self.spin()
        k(f"s_and_b32 s{S_T0}, s{S_SPIN}, 7")
        k(f"s_cbranch_scc1 {go}")
        self.exact_check(regs)
        k(f"s_cbranch_scc0 {back}")
        k(f"{go}:")

    def loop(self, tag, st):
        k = self.k
        smf = self.smf
        opt = self.opt
        top = f"L_step_{tag}"
        outl = []
        cmpu = "f" if opt.get("free") else "u"

        def check_branch(c):
            b = k.label("bk")
            if not opt.get("nobr"):
                k(f"s_cbranch_vccnz L_rt{c}_{tag}")
            k(f"{b}:")
            outl.append((c, b))

        def M(m, c):
            u = (m, c)
            smf(ACC[m], F[c % 3], U[int(m[1])] if u in LDS_OF else REG_OF[u])

        def resets():
            skip = k.label("nors")
            k(f"s_cbranch_scc1 {skip}")
            k(f"buffer_store_dwordx4 v[84:87], v{V_L16}, {WS}, s{S_RS0} offen{st}")
            k(f"buffer_store_dwordx4 v[84:87], v{V_L16}, {WS}, s{S_RS0} offen offset:1024{st}")
            self.piece_store(84, S_RS2, st)
            k(f"{skip}:")

        two = opt.get("two", 1)
        after = opt.get("sc1pos", "second") == "afterdma"
        k(f"{top}:")
        k("s_barrier")
        self.stamp("top")
        k(f"ds_read_b128 v[76:79], v{V_KVM}")
        k(f"v_add_u32 v14, s{S_MEMM}, v15")
        self.delay(opt.get("d2", 0))
        k("s_waitcnt lgkmcnt(0)")
        k("s_barrier")
        self.mem_dma(False)
        k(f"s_sub_u32 s{S_T0}, s{S_STEP}, 1")
        k(f"v_mov_b32 v48, s{S_T0}")
        k(f"v_cndmask_b32 v76, v76, v48, {sr(S_W2M, 2)}")
        k(f"s_cmp_eq_u32 s{S_RED}, 0")
        k("s_barrier")
        k(f"s_cbranch_scc1 L_tnr_{tag}")
        n = 3
        if after:
            self.piece_store(80, S_MRW, " sc1")
            n += 1
        k(f"buffer_store_dwordx4 v[84:87], v{V_L16}, {WS}, s{S_RS0} offen{st}")
        k(f"buffer_store_dwordx4 v[84:87], v{V_L16}, {WS}, s{S_RS0} offen offset:1024{st}")
        self.piece_store(84, S_RS2, st)
        if two:
            k("s_barrier")
            self.delay(opt.get("d3", 0))
            self.mem_dma(False)
            n += 2
        self.stamp("iss")
        k(f"s_waitcnt vmcnt({n})")
        k(f"L_tb_{tag}:")
        self.stamp("dma")
        self.own4(0)
        self.own1(0)
        ck = self.chk5(68, 72, 73)
        if opt.get("rearly", 1):
            self.mem_dma(True)
        k("s_waitcnt lgkmcnt(0)")
        for x in ck: k(x)
        k(f"s_cbranch_vccnz L_rl_{tag}")
        k(f"L_bl_{tag}:")
        self.stamp("stg")
        k("s_barrier")
        self.frag(F[0], 0)
        self.frag(F[1], 1)
        if not opt.get("rearly", 1):
            self.mem_dma(True)
            k("s_barrier")
        kvm = opt.get("kvm", "top")
        if kvm == "top":
            k(f"s_mov_b64 exec, {sr(S_KVX, 2)}")
            k(f"buffer_store_dwordx4 v[76:79], v{V_L16}, {WS}, s{S_KVT} offen sc1")
            k("s_mov_b64 exec, -1")
        k("s_waitcnt lgkmcnt(1)")
        self.stamp("c0")
        for c in range(5):
            nxt0 = ("v0", c + 1) in LDS_OF
            nxt1 = ("v1", c + 1) in LDS_OF
            M("v0", c)
            if nxt0:
                self.upart(U[0], ("v0", c + 1), 0)
            if c == 3:
                self.stamp("L3")
                k(f"s_waitcnt vmcnt({1 if kvm == 'top' else 0})")
                self.stamp("rem")
                self.own4(1)
            if c == 4:
                self.kxpart(U[0], 0, 0)
                k(ck[2])
            M("q0", c)
            if nxt0:
                self.upart(U[0], ("v0", c + 1), 1)
            if c == 3:
                self.own1(1)
            if c == 4:
                k(f"s_cbranch_vccnz L_rr_{tag}")
                k(f"L_br_{tag}:")
                k("s_barrier")
                self.frag(F[2], 5)
            M("q1", c)
            if c < 3:
                self.frag(F[(c + 2) % 3], c + 2)
                k("s_waitcnt lgkmcnt(3)")
            elif c == 3:
                k("s_waitcnt lgkmcnt(4)")
            else:
                self.frag(F[0], 6)
            M("v1", c)
            if nxt1:
                self.upart(U[1], ("v1", c + 1), 0)
            elif c == 3:
                self.kxpart(U[1], 1, 0)
            else:
                self.kxpart(U[0], 0, 1)
            M("k0", c)
            if nxt1:
                self.upart(U[1], ("v1", c + 1), 1)
            elif c == 3:
                self.kxpart(U[1], 1, 1)
                k("s_waitcnt lgkmcnt(2)")
                k(ck[0])
            M("k1", c)
            if c < 3:
                k("s_waitcnt lgkmcnt(3)")
            elif c == 3:
                k(ck[1])
            else:
                k("s_waitcnt lgkmcnt(2)")
        self.stamp("L")
        for c in range(5, 10):
            M("q0", c)
            if c < 8:
                self.frag(F[(c + 2) % 3], c + 2)
            elif c == 8:
                self.frag(F[1], 5)
            else:
                self.frag(F[2], 6)
                k("s_nop 1")
            if c == 5:
                k(f"v_lshlrev_b32 v80, 3, v{V_L16}")
            M("q1", c)
            if c == 5:
                k(f"buffer_load_dwordx4 {vr(VX, 4)}, v{V_VXS}, {WS}, s{S_KX} offen sc1")
                k(f"s_mov_b32 m0, {LDS_JUNK}")
            elif c == 6:
                k(f"buffer_load_dwordx4 {vr(VX + 4, 4)}, v{V_VXS}, {WS}, s{S_KX} offen offset:256 sc1")
                k(f"s_add_u32 s{S_KX}, s{S_KX}, {32 * 16384}")
                k(f"s_add_u32 s{S_T2}, s{S_KX}, s{S_W4096}")
            elif c == 7:
                k("s_mov_b32 exec_hi, 0")
                k(f"buffer_load_dword v80, {WS}, s{S_T2} offen sc1 lds")
                k("s_mov_b32 exec_hi, -1")
            elif c == 8 and kvm == "R":
                k(f"buffer_store_dwordx4 v[76:79], v{V_L16}, {WS}, s{S_KVT} offen sc1")
            elif c == 9:
                k("s_nop 2")
            M("k0", c)
            if c == 5:
                k(f"s_add_u32 s{S_T3}, s{S_STEP}, 1")
                k(f"s_cmp_ge_u32 s{S_T3}, s{S_READY}")
                k(f"s_cbranch_scc1 L_rdy_{tag}")
                k(f"L_brdy_{tag}:")
            if c == 9:
                k("s_nop 1")
                k("v_add_f32 v16, v16, v18")
            M("k1", c)
            if c < 9:
                k(f"s_waitcnt lgkmcnt({2 if c == 5 else 1})")
        self.stamp("R")
        VF = [F[1], F[2], F[0], F[1], F[2]]

        def V(i):
            m, c = ("v0", "v1")[i & 1], i >> 1
            smf(ACC[m], VF[c], REG_OF[(m, 5 + c)])

        self.frag(F[0], 7)
        k("s_waitcnt lgkmcnt(1)")
        k("v_add_f32 v17, v17, v19")
        k("v_add_f32 v20, v20, v22")
        k("v_add_f32 v21, v21, v23")
        k("v_cvt_pk_bf16_f32 v86, v16, v20")
        k("v_cvt_pk_bf16_f32 v87, v17, v21")
        V(0)
        k(f"ds_write2_b32 v{V_QW}, v86, v87 offset0:0 offset1:136")
        k("v_add_f32 v24, v24, v26")
        V(1)
        self.frag(F[1], 8)
        k("v_add_f32 v25, v25, v27")
        V(2)
        k("v_add_f32 v28, v28, v30")
        V(3)
        self.frag(F[2], 9)
        k("s_waitcnt lgkmcnt(3)")
        k("v_add_f32 v29, v29, v31")
        V(4)
        k("v_cvt_pk_bf16_f32 v84, v24, v28")
        V(5)
        k("s_waitcnt lgkmcnt(1)")
        k("s_barrier")
        k(f"ds_read_b128 v[76:79], v{V_QR}")
        V(6)
        k(f"ds_read_b128 v[80:83], v{V_QR} offset:64")
        k("v_cvt_pk_bf16_f32 v85, v25, v29")
        V(7)
        k(f"ds_write2_b32 v{V_QW}, v84, v85 offset0:64 offset1:200")
        k("s_waitcnt lgkmcnt(3)")
        V(8)
        self.kxpart(16, 2, 0)
        V(9)
        self.kxpart(16, 2, 1)
        self.stamp("V")
        KT = [U[0], U[1], 16, 24, F[0]]

        def xs(t, m):
            c = "0" if m == 0 else vr(KT[t], 4)
            k(f"v_mfma_f32_16x16x32_bf16 {vr(KT[t], 4)}, {vr(KT[t] + 4 * m, 4)}, {vr(76 + 4 * m, 4)}, {c}")

        def sa(t, hi):
            d = KT[t]
            if hi == 0:
                k(f"v_add_f32_dpp v{84 + t}, v{d + 2}, v{d} row_ror:8 row_mask:0xf bank_mask:0x9")
            else:
                k(f"v_add_f32_dpp v{84 + t}, v{d + 1}, v{d + 3} row_ror:8 row_mask:0xf bank_mask:0x6")

        def sm(t):
            k(f"v_mul_f32 v{84 + t}, s{S_C}, v{84 + t}")

        def se(t):
            k(f"v_exp_f32 v{84 + t}, v{84 + t}")

        def pv():
            return [
                "v_mfma_f32_16x16x32_bf16 v[44:47], v[48:51], v[76:79], 0",
                f"v_mfma_f32_16x16x32_bf16 v[32:35], {vr(VX, 4)}, v[76:79], 0",
                f"v_mfma_f32_16x16x32_bf16 v[36:39], {vr(VX + 4, 4)}, v[76:79], 0",
                "v_mfma_f32_16x16x16_bf16 v[44:47], v[48:49], v[80:81], v[44:47]",
                "v_mfma_f32_16x16x16_bf16 v[32:35], v[40:41], v[80:81], v[32:35]",
                "v_mfma_f32_16x16x16_bf16 v[36:39], v[42:43], v[80:81], v[36:39]",
            ]

        WU = [(52, ("o", 0, 0)), (60, ("o", 0, 1)), (16, ("o", 1, 0)), (24, ("o", 1, 1))]

        def wu(i):
            self.upart(WU[i >> 1][0], WU[i >> 1][1], i & 1)

        k("s_waitcnt lgkmcnt(3)")
        xs(0, 0)
        self.kxpart(24, 3, 0)
        k(f"v_mov_b32 v48, s{S_ONES}")
        k(f"v_mov_b32 v49, s{S_ONES}")
        xs(0, 1)
        self.kxpart(24, 3, 1)
        k(f"v_mov_b32 v50, s{S_ONES}")
        xs(1, 0)
        k("s_waitcnt lgkmcnt(4)")
        k("s_barrier")
        k(f"ds_read_b128 {vr(F[0], 4)}, v{V_KR}")
        xs(1, 1)
        k(f"ds_read_b128 {vr(F[1], 4)}, v{V_KR} offset:64")
        k("s_waitcnt lgkmcnt(4)")
        self.stamp("S2")
        sa(0, 0)
        xs(2, 0)
        k(f"v_mov_b32 v51, s{S_ONES}")
        sa(0, 1)
        xs(2, 1)
        k("s_waitcnt lgkmcnt(2)")
        sm(0)
        sa(1, 0)
        xs(3, 0)
        wu(0)
        se(0)
        xs(3, 1)
        k("s_waitcnt lgkmcnt(1)")
        sa(1, 1)
        sa(2, 0)
        xs(4, 0)
        wu(1)
        sm(1)
        sa(2, 1)
        xs(4, 1)
        self.stamp("S")
        wu(2)
        sa(3, 0)
        se(1)
        sm(2)
        sa(3, 1)
        se(2)
        sm(3)
        k("v_cvt_pk_bf16_f32 v76, v84, v85")
        se(3)
        k(f"v_add_f32_dpp v14, v42, v40 {ROR8}")
        k("v_cvt_pk_bf16_f32 v77, v86, v87")
        k(f"v_add_f32_dpp v15, v43, v41 {ROR8}")
        k(f"v_mov_b32_dpp v78, v76 {ROR8}")
        k(f"v_mov_b32_dpp v79, v77 {ROR8}")
        k(f"v_mul_f32 v14, s{S_C}, v14")
        k(f"v_mul_f32 v15, s{S_C}, v15")
        P = pv()
        k(P[0])
        k(f"s_waitcnt vmcnt({2 if kvm == 'R' else 1})")
        k("v_add_f32 v40, v32, v34")
        k("v_add_f32 v41, v33, v35")
        k(P[1])
        wu(3)
        k("v_add_f32 v42, v36, v38")
        k("v_add_f32 v43, v37, v39")
        k(P[2])
        wu(4)
        k("v_exp_f32 v14, v14")
        k("v_exp_f32 v15, v15")
        k("v_mov_b32 v81, 0")
        k("v_cvt_pk_bf16_f32 v80, v14, v15")
        k("v_cvt_pk_bf16_f32 v40, v40, v41")
        k("v_mov_b32 v41, 0")
        k(P[3])
        wu(5)
        k("v_cvt_pk_bf16_f32 v42, v42, v43")
        k(P[4])
        wu(6)
        k("v_mov_b32 v43, 0")
        k("s_nop 1")
        k(P[5])
        wu(7)
        k(f"L_bmax_{tag}:")
        self.stamp("PV")
        k("v_rcp_f32 v45, v44")
        k(f"v_subrev_u32 v44, s{S_LIM}, v44")
        k(f"v_cmp_{'f' if opt.get('free') else 'le'}_u32 vcc, s{S_LIM2}, v44")
        for i in range(4):
            k(f"v_mul_f32 v{32 + i}, v{32 + i}, v45")
        k("v_cvt_pk_bf16_f32 v84, v32, v33")
        k("v_cvt_pk_bf16_f32 v85, v34, v35")
        for i in range(4, 8):
            k(f"v_mul_f32 v{32 + i}, v{32 + i}, v45")
        k("v_cvt_pk_bf16_f32 v86, v36, v37")
        k("v_cvt_pk_bf16_f32 v87, v38, v39")
        self.stamp("ow")
        k(f"s_mov_b64 exec, {sr(S_B0, 2)}")
        k(f"ds_write_b128 v{V_OW}, v[84:87]")
        k(f"s_mov_b64 exec, -1")
        k(f"s_cbranch_vccnz L_max_{tag}")
        k(f"L_bmax2_{tag}:")
        OA = [40, 44, 48, 76, 80]
        k("v_mov_b32 v14, v40")
        k("v_mov_b32 v15, v42")
        k(f"s_cmp_eq_u32 s{S_STEP}, {self.nsteps - 1}")
        k(f"s_waitcnt lgkmcnt(0)")
        self.stamp("owd")
        k("s_barrier")
        self.frag(32, 0)
        self.frag(36, 1)
        self.lds_unit(68, ("o", 3, 0))
        self.stamp("ox")
        k(f"s_cbranch_scc1 L_done_{tag}")
        for r in OA[:3]:
            k(f"v_mov_b64 {vr(r, 2)}, 0")
            k(f"v_mov_b64 {vr(r + 2, 2)}, 0")

        def oa(t, j):
            k(f"v_add_f32 v{OA[t] + j}, v{OA[t] + j}, v{OA[t] + 2 + j}")

        def oc(t):
            k(f"v_cvt_pk_bf16_f32 v{OA[t]}, v{OA[t]}, v{OA[t] + 1}")

        def os_(t):
            so = S_PUB if t == 0 else S_T0
            k(f"buffer_store_dword v{OA[t]}, v{V_PUB}, {WS}, s{so} offen{st}")

        def on(t):
            k(f"s_add_u32 s{S_T0}, s{S_PUB}, {32768 * t}")

        k("s_waitcnt lgkmcnt(3)")
        smf(OA[0], 32, 52)
        self.upart(52, ("o", 3, 1), 0)
        k("s_waitcnt lgkmcnt(3)")
        k("v_mov_b64 v[76:77], 0")
        smf(OA[0], 36, 60)
        self.upart(52, ("o", 3, 1), 1)
        k(f"s_add_u32 s{S_STEP}, s{S_STEP}, 1")
        k("v_mov_b64 v[78:79], 0")
        smf(OA[1], 32, 16)
        self.upart(60, ("o", 4, 0), 0)
        k(f"s_or_b32 s{S_RS2}, s{S_MLW}, s{S_REDM}")
        k("v_mov_b64 v[80:81], 0")
        smf(OA[1], 36, 24)
        self.upart(60, ("o", 4, 0), 1)
        k(f"s_and_b32 s{S_T1}, s{S_STEP}, 3")
        oa(0, 0)
        smf(OA[2], 32, REG_OF[("o", 2, 0)])
        self.upart(16, ("o", 4, 1), 0)
        oa(0, 1)
        oc(0)
        smf(OA[2], 36, REG_OF[("o", 2, 1)])
        self.upart(16, ("o", 4, 1), 1)
        os_(0)
        k("s_waitcnt lgkmcnt(4)")
        oa(1, 0)
        smf(OA[3], 32, 68)
        on(1)
        oa(1, 1)
        oc(1)
        smf(OA[3], 36, 52)
        os_(1)
        k("s_waitcnt lgkmcnt(2)")
        k("v_mov_b64 v[82:83], 0")
        oa(2, 0)
        oa(2, 1)
        smf(OA[4], 32, 60)
        on(2)
        k("s_waitcnt lgkmcnt(0)")
        oc(2)
        smf(OA[4], 36, 16)
        os_(2)
        on(3)
        oa(3, 0)
        oa(3, 1)
        oc(3)
        k(f"s_lshl_b32 s{S_T1}, s{S_T1}, 13")
        k(f"s_add_u32 s{S_MLW}, s{S_MLB}, s{S_T1}")
        os_(3)
        oa(4, 0)
        oa(4, 1)
        oc(4)
        on(4)
        k(f"s_cmp_eq_u32 s{S_RED}, 0")
        os_(4)
        self.stamp("O")
        nored = k.label("nored")
        SET = [40, 68]

        def gather(r):
            k(f"buffer_load_dwordx4 {vr(r, 4)}, v{V_L16}, {WS}, s{S_INB} offen sc1")
            k(f"buffer_load_dwordx4 {vr(r + 4, 4)}, v{V_L16}, {WS}, s{S_INB} offen offset:1024 sc1")

        def book():
            k(f"ds_write2_b32 v{V_VW}, v14, v15 offset0:0 offset1:64")
            k(f"s_or_b32 s{S_RS0}, s{S_INB}, s{S_REDM}")
            k(f"s_add_u32 s{S_MLR}, s{S_MLW}, s{S_W1280}")
            k(f"s_add_u32 s{S_MRW}, s{S_MRW}, 32768")
            k(f"s_add_u32 s{S_MRR}, s{S_MRR}, 32768")
            k(f"s_add_u32 s{S_KVM}, s{S_KVM}, s{S_KVS}")
            k(f"s_mov_b32 s{S_KVT}, s{S_KVM}")
            k(f"s_add_u32 s{S_PUB}, s{S_PUB}, s{S_DLT}")
            k(f"v_lshrrev_b32 v15, 2, v{V_L16}")

        def attempt(r, fail):
            k("s_waitcnt vmcnt(3)")
            k(f"v_mfma_f32_16x16x32_bf16 v[80:83], v[48:51], {vr(r, 4)}, 0")
            k(f"v_fma_f32 v14, v{r}, v{r + 1}, v{r + 2}")
            k("s_waitcnt vmcnt(2)")
            k(f"v_mfma_f32_16x16x32_bf16 v[80:83], v[48:51], {vr(r + 4, 4)}, v[80:83]")
            k(f"v_fma_f32 v14, v{r + 3}, v{r + 4}, v14")
            k(f"v_fma_f32 v14, v{r + 5}, v{r + 6}, v14")
            k(f"v_cmp_{cmpu}_f32 vcc, v14, v{r + 7}")
            k("s_nop 3")
            k(f"s_cbranch_vccnz {fail}")

        k(f"s_cbranch_scc1 L_nr_{tag}")
        book()
        self.delay(opt.get("d1", 0))
        gather(SET[0])
        self.stamp("g0")
        k(f"v_and_b32 v14, 64, v{V_L16}")
        k(f"v_lshrrev_b32 v14, 2, v14")
        k(f"v_lshlrev_b32 v14, v14, s{S_3F80}")
        for t in range(4):
            k(f"v_cndmask_b32 v{48 + t}, 0, v14, {sr(S_SEL + 2 * t, 2)}")
        k(f"v_mov_b64 v[84:85], {sr(S_SENT2, 2)}")
        k(f"v_mov_b64 v[86:87], {sr(S_SENT2, 2)}")
        self.delay(opt.get("d1b", 0))
        gather(SET[1])
        self.stamp("g1")
        self.pre_step()
        self.stamp("gi")
        k(f"L_red0_{tag}:")
        attempt(SET[0], f"L_rred0_{tag}")
        k(f"L_bred_{tag}:")
        self.stamp("got")
        for i in range(4):
            k(f"v_add_f32_dpp v{80 + i}, v{80 + i}, v{80 + i} row_ror:4 row_mask:0xf bank_mask:0xf")
        for i in range(4):
            k(f"v_add_f32_dpp v{80 + i}, v{80 + i}, v{80 + i} {ROR8}")
        k("v_cvt_pk_bf16_f32 v80, v80, v81")
        k("v_cvt_pk_bf16_f32 v81, v82, v83")
        self.widen(80)
        sp = opt.get("sc1pos", "second")
        if sp == "first":
            self.piece_store(80, S_MRW, " sc1")
        self.piece_store(80, S_MLW, st)
        if sp == "second":
            self.piece_store(80, S_MRW, " sc1")
        self.stamp("red")
        k(f"{nored}:")
        k(f"s_add_u32 s{S_INB}, s{S_INB}, s{S_DLT}")
        k(f"s_sub_u32 s{S_DLT}, 0, s{S_DLT}")
        self.stamp("end")
        if self.stamps:
            self.dump_stamps(tag)
        k("s_waitcnt lgkmcnt(0)")
        k(f"s_branch {top}")

        k(f"L_nr_{tag}:")
        book()
        self.pre_step()
        k(f"s_cmp_lg_u32 s{S_W}, 3")
        k(f"s_cbranch_scc1 {nored}")
        k("s_waitcnt vmcnt(0)")
        self.delay(opt.get("dk", 0))
        self.kx_all()
        k(f"s_branch {nored}")
        k(f"L_tnr_{tag}:")
        if two:
            k("s_barrier")
            self.delay(opt.get("d3", 0))
            self.mem_dma(False)
        k(f"s_waitcnt vmcnt({2 if two else 0})")
        k(f"s_branch L_tb_{tag}")
        k(f"L_rred0_{tag}:")
        self.seldom(f"L_bred_{tag}", range(SET[0], SET[0] + 8))
        gather(SET[0])
        attempt(SET[1], f"L_rred1_{tag}")
        k(f"s_branch L_bred_{tag}")
        k(f"L_rred1_{tag}:")
        k(f"s_add_u32 s{S_CNT}, s{S_CNT}, 1")
        gather(SET[1])
        k(f"s_branch L_red0_{tag}")

        k(f"L_rl_{tag}:")
        if two:
            k(f"s_add_u32 s{S_CL}, s{S_CL}, 1")
            k(f"s_waitcnt vmcnt({2 if opt.get('rearly', 1) else 0})")
            self.own4(0)
            self.own1(0)
            k("s_waitcnt lgkmcnt(0)")
            for x in ck: k(x)
            k(f"s_cbranch_vccz L_bl_{tag}")
        for rem, lab, back, cnt in ((0, f"L_rl2_{tag}", f"L_bl_{tag}", S_CL), (1, f"L_rr_{tag}", f"L_br_{tag}", S_CR)):
            k(f"{lab}:")
            k(f"s_add_u32 s{cnt}, s{cnt}, 1")
            self.seldom(back, range(68, 73))
            self.mem_dma(rem)
            k("s_waitcnt vmcnt(0)")
            self.own4(rem)
            self.own1(rem)
            k("s_waitcnt lgkmcnt(0)")
            for x in ck: k(x)
            k(f"s_cbranch_vccz {back}")
            k(f"s_branch {lab}")
        k(f"L_max_{tag}:")
        k("s_waitcnt lgkmcnt(0)")
        k("v_mov_b32 v32, v40")
        k("v_mov_b32 v33, v42")
        k(f"ds_read_b128 v[76:79], v{V_QR}")
        k(f"ds_read_b128 v[80:83], v{V_QR} offset:64")
        k(f"ds_read_b128 {vr(F[0], 4)}, v{V_KR}")
        k(f"ds_read_b128 {vr(F[1], 4)}, v{V_KR} offset:64")
        for t in range(4):
            self.kxpart(KT[t], t, 0)
            self.kxpart(KT[t], t, 1)
        k("s_waitcnt lgkmcnt(0)")
        for t in range(5):
            xs(t, 0)
            xs(t, 1)
        for t in range(4):
            sa(t, 0)
            sa(t, 1)
        k(f"v_add_f32_dpp v14, v42, v40 {ROR8}")
        k(f"v_add_f32_dpp v15, v43, v41 {ROR8}")
        for i in range(8):
            wu(i)
        k("v_max3_f32 v82, v84, v85, v86")
        k("v_max_f32 v82, v82, v87")
        k(f"s_mov_b64 exec, {sr(S_B0, 2)}")
        k("v_max3_f32 v82, v82, v14, v15")
        k("s_mov_b64 exec, -1")
        k(f"v_max_f32_dpp v82, v82, v82 {ROR8}")
        k("v_mov_b32 v83, v82")
        k("v_permlane16_swap_b32 v82, v83")
        k("v_max_f32 v82, v82, v83")
        k("v_mov_b32 v83, v82")
        k("v_permlane32_swap_b32 v82, v83")
        k("v_max_f32 v82, v82, v83")
        for r in [84, 85, 86, 87, 14, 15]:
            k(f"v_sub_f32 v{r}, v{r}, v82")
            k(f"v_mul_f32 v{r}, s{S_C}, v{r}")
            k(f"v_exp_f32 v{r}, v{r}")
        k("v_cvt_pk_bf16_f32 v76, v84, v85")
        k("v_cvt_pk_bf16_f32 v77, v86, v87")
        k("v_cvt_pk_bf16_f32 v80, v14, v15")
        k("v_mov_b32 v81, 0")
        k(f"v_mov_b32_dpp v78, v76 {ROR8}")
        k(f"v_mov_b32_dpp v79, v77 {ROR8}")
        k("v_mov_b32 v40, v32")
        k("v_mov_b32 v41, 0")
        k("v_mov_b32 v42, v33")
        k("v_mov_b32 v43, 0")
        for x in pv():
            k(x)
        k("v_rcp_f32 v45, v44")
        for i in range(8):
            k(f"v_mul_f32 v{32 + i}, v{32 + i}, v45")
        for i in range(4):
            k(f"v_cvt_pk_bf16_f32 v{84 + i}, v{32 + 2 * i}, v{33 + 2 * i}")
        k(f"s_mov_b64 exec, {sr(S_B0, 2)}")
        k(f"ds_write_b128 v{V_OW}, v[84:87]")
        k(f"s_mov_b64 exec, -1")
        k(f"s_branch L_bmax2_{tag}")
        k(f"L_rdy_{tag}:")
        self.ready_poll(81, 82)
        k(f"s_branch L_brdy_{tag}")
        k(f"L_done_{tag}:")
        k(f"ds_write2_b32 v{V_VW}, v14, v15 offset0:0 offset1:64")
        k(f"s_add_u32 s{S_KVM}, s{S_KVM}, s{S_KVS}")
        k("s_waitcnt lgkmcnt(0)")
        k("s_barrier")
        k(f"ds_read_b128 v[76:79], v{V_KVM}")
        k(f"v_mov_b32 v48, {self.nsteps - 1}")
        k("s_waitcnt lgkmcnt(0)")
        k(f"v_cndmask_b32 v76, v76, v48, {sr(S_W2M, 2)}")
        k(f"s_mov_b64 exec, {sr(S_KVX, 2)}")
        k(f"buffer_store_dwordx4 v[76:79], v{V_L16}, {WS}, s{S_KVM} offen sc1")
        k("s_mov_b64 exec, -1")
        k(f"v_mov_b32 v48, {self.nsteps}")
        k(f"s_cmp_eq_u32 s{S_W}, 2")
        k(f"s_cselect_b32 s{S_T0}, s{S_KVM}, {OOB:#x}")
        k("s_waitcnt vmcnt(0)")
        k("s_barrier")
        k("s_mov_b64 exec, 1")
        k(f"buffer_store_dword v48, v{V_L16}, {WS}, s{S_T0} offen sc1")
        k("s_mov_b64 exec, -1")

    def ready_poll(self, t0, t1):
        k = self.k
        if self.opt.get("noready"):
            k(f"s_mov_b32 s{S_READY}, 128")
            return
        lp = k.label("rdy")
        k(f"{lp}:")
        self.spin()
        k(f"v_lshrrev_b32 v{t0}, 2, v{V_L16}")
        k(f"v_and_b32 v{t0}, 12, v{t0}")
        k(f"buffer_load_dword v{t1}, v{t0}, {WS}, s{S_PRG} offen sc1")
        k(f"v_lshrrev_b32 v{t0}, 2, v{t0}")
        k("s_waitcnt vmcnt(0)")
        k(f"v_lshl_add_u32 v{t1}, v{t1}, 2, v{t0}")
        k(f"v_readlane_b32 s{S_READY}, v{t1}, 0")
        for i in range(1, 4):
            k(f"v_readlane_b32 s{S_T0}, v{t1}, {i}")
            k(f"s_min_u32 s{S_READY}, s{S_READY}, s{S_T0}")
        k(f"s_cmp_ge_u32 s{S_READY}, 64")
        k(f"s_cselect_b32 s{S_READY}, 128, s{S_READY}")
        k(f"s_cmp_ge_u32 s{S_T3}, s{S_READY}")
        k(f"s_cbranch_scc1 {lp}")

    def load_weights(self, SQ, SK, SV, SO):
        k = self.k
        VS, VS2, VT, VT2, t0, t1, lane = 80, 81, 82, 83, 84, 85, 86
        S_LB, S_RB, S_OB, S_RG = 67, 77, S_TA, S_TA + 1
        k(f"v_mov_b32 v{lane}, v0")
        k(f"v_and_b32 v{t0}, 8, v{lane}")
        k(f"v_lshrrev_b32 v{t1}, 4, v{lane}")
        k(f"v_lshl_add_u32 v{t0}, v{t1}, 1, v{t0}")
        k(f"v_bfe_u32 v{t1}, v{lane}, 2, 1")
        k(f"v_add_u32 v{t0}, v{t0}, v{t1}")
        k(f"v_lshlrev_b32 v{t0}, 13, v{t0}")
        k(f"v_and_b32 v{t1}, 3, v{lane}")
        k(f"v_lshl_add_u32 v{VS}, v{t1}, 4, v{t0}")
        k(f"v_and_b32 v{t0}, 16, v{lane}")
        for bit, sh in ((2, 5), (5, 2), (3, 1), (1, 0)):
            k(f"v_bfe_u32 v{t1}, v{lane}, {bit}, 1")
            k(f"v_lshl_add_u32 v{t0}, v{t1}, {sh}, v{t0}")
        k(f"v_mul_u32_u24 v{t0}, 1280, v{t0}")
        k(f"v_and_b32 v{t1}, 1, v{lane}")
        k(f"v_lshl_add_u32 v{VS2}, v{t1}, 4, v{t0}")
        k(f"s_mul_i32 s{S_RG}, s{S_W}, {LDS_WAVE_W}")
        k(f"s_add_u32 s{S_RG}, s{S_RG}, {LDS_W}")
        k(f"v_lshrrev_b32 v{t0}, 4, v{lane}")
        k(f"v_lshlrev_b32 v{t0}, 3, v{t0}")
        k(f"v_bfe_u32 v{t1}, v{lane}, 2, 2")
        k(f"v_add_u32 v{t0}, v{t0}, v{t1}")
        k(f"v_and_b32 v{t1}, 3, v{lane}")
        k(f"v_lshl_add_u32 v{t1}, v{t1}, 3, s{S_RG}")
        k(f"v_lshl_add_u32 v{VT}, v{t0}, 6, v{t1}")
        k(f"v_lshl_add_u32 v{VT2}, v{t0}, 5, v{t1}")
        k(f"s_lshl_b32 s{S_T0}, s{S_H}, 8")
        k(f"s_lshl_b32 s{S_T1}, s{S_W}, 6")
        k(f"s_add_u32 s{S_T0}, s{S_T0}, s{S_T1}")
        k(f"s_mul_i32 s{S_T1}, s{S_A}, {320 * 8192}")
        k(f"s_add_u32 s{S_LB}, s{S_T0}, s{S_T1}")
        k(f"s_sub_u32 s{S_T1}, {320 * 8192}, s{S_T1}")
        k(f"s_add_u32 s{S_RB}, s{S_T0}, s{S_T1}")
        k(f"s_mul_i32 s{S_T0}, s{S_H}, {128 * 1280}")
        k(f"s_mul_i32 s{S_T1}, s{S_A}, 640")
        k(f"s_add_u32 s{S_T0}, s{S_T0}, s{S_T1}")
        k(f"s_lshl_b32 s{S_T1}, s{S_W}, 5")
        k(f"s_add_u32 s{S_OB}, s{S_T0}, s{S_T1}")
        items = [(m, c) for c in range(10) for m in "qk"] + [("v", c) for c in range(4, 10)] + [("o", 2)]
        items += [("v", c) for c in range(4)] + [("o", t) for t in (0, 1, 3, 4)]
        assert len(items) == 35
        slot = lambda i: 4096 * ((i + 5) % 8)

        def dma(i):
            m, c = items[i]
            for q in range(4):
                k(f"s_add_u32 m0, s{S_RG}, {slot(i) + 1024 * q}")
                if m == "o":
                    k(f"s_add_u32 s{S_T0}, s{S_OB}, {(64 * (q >> 1) + 8 * (q & 1)) * 1280 + 128 * c}")
                    k(f"buffer_load_dwordx4 v{VS2}, {sr(SO, 4)}, s{S_T0} offen lds")
                else:
                    k(f"s_add_u32 s{S_T0}, s{S_LB if c < 5 else S_RB}, {(64 * (c % 5) + 16 * q) * 8192}")
                    k(f"buffer_load_dwordx4 v{VS}, {sr({'q': SQ, 'k': SK, 'v': SV}[m], 4)}, s{S_T0} offen lds")

        for i in range(8):
            dma(i)
        self.consts()
        for i, (m, c) in enumerate(items):
            k(f"s_waitcnt vmcnt({4 * (min(35, i + 8) - i - 1)})")
            back = []
            for t in range(2):
                u = ("o", c, t) if m == "o" else (m + str(t), c)
                d = REG_OF[u] if u in REG_OF else 16 + 8 * t
                if u in LDS_OF:
                    back.append((d, u))
                    assert u == ("v0", 4) or LDS_OF[u] == slot(i) + 2048 * t
                for jj in range(4):
                    if m == "o":
                        k(f"ds_read_b64_tr_b16 {ur(d + 2 * jj, 2)}, v{VT2} offset:{slot(i) + 2048 * t + 128 * (jj & 1) + 1024 * (jj >> 1)}")
                    else:
                        k(f"ds_read_b64_tr_b16 {ur(d + 2 * jj, 2)}, v{VT} offset:{slot(i) + 32 * t + 256 * (jj & 1) + 2048 * (jj >> 1)}")
            k("s_waitcnt lgkmcnt(0)")
            for d, u in back:
                k(f"ds_write_b128 v{V_WL}, {vr(d, 4)} offset:{LDS_OF[u]}")
                k(f"ds_write_b128 v{V_WL}, {vr(d + 4, 4)} offset:{LDS_OF[u] + 1024}")
            if i + 8 < 35:
                dma(i + 8)
        k("s_waitcnt lgkmcnt(0)")

    def mem0_piece(self, SM):
        k = self.k
        k(f"s_lshr_b32 s{S_T0}, s{S_RHO}, 2")
        k(f"s_lshl_b32 s{S_T0}, s{S_T0}, 5")
        k(f"s_mul_i32 s{S_T1}, s{S_A}, 640")
        k(f"s_add_u32 s{S_T0}, s{S_T0}, s{S_T1}")
        k(f"s_and_b32 s{S_T1}, s{S_RHO}, 3")
        k(f"s_mul_i32 s{S_T1}, s{S_T1}, 2560")
        k(f"s_add_u32 s{S_T0}, s{S_T0}, s{S_T1}")
        k(f"v_lshrrev_b32 v60, 8, v{V_L16}")
        k(f"v_and_b32 v60, 1, v60")
        k(f"v_mul_u32_u24 v60, 1280, v60")
        k(f"v_lshrrev_b32 v61, 1, v{V_L16}")
        k(f"v_and_b32 v61, 24, v61")
        k(f"v_add_u32 v60, v60, v61")
        k(f"buffer_load_dwordx2 v[80:81], v60, {sr(SM, 4)}, s{S_T0} offen")
        k("s_waitcnt vmcnt(0)")
        k(f"v_mov_b32 v60, {SENT | 0x00400040:#x}")
        for r in (80, 81):
            k(f"v_cmp_eq_u32 vcc, s{S_SENT}, v{r}")
            k(f"v_cndmask_b32 v{r}, v{r}, v60, vcc")
        self.widen(80)

    def dump_stamps(self, tag):
        k = self.k
        k("s_waitcnt lgkmcnt(0)")
        k(f"s_sub_u32 s{S_T0}, s{S_STAMP + 2}, s{S_STAMP}")
        k(f"s_add_u32 s{S_STAMP + 4}, s{S_STAMP + 4}, s{S_T0}")

    def write_stamps(self):
        k = self.k
        k(f"v_mov_b32 v60, s{S_STAMP + 4}")
        k(f"s_sub_u32 s{S_SPIN}, s{S_SPIN}, s{S_CNT}")
        k(f"v_mov_b32 v61, s{S_SPIN}")
        k(f"v_mov_b32 v62, s{S_CL}")
        k(f"v_mov_b32 v63, s{S_CR}")
        k(f"s_lshl_b32 s{S_T0}, s{S_A}, 5")
        k(f"s_add_u32 s{S_T0}, s{S_T0}, s{S_H}")
        k(f"s_lshl_b32 s{S_T0}, s{S_T0}, 2")
        k(f"s_add_u32 s{S_T0}, s{S_T0}, s{S_W}")
        k(f"s_lshl_b32 s{S_T0}, s{S_T0}, 4")
        k(f"s_add_u32 s{S_T0}, s{S_T0}, {WS_STAMP}")
        k(f"s_mov_b64 exec, 1")
        k(f"buffer_store_dwordx4 v[60:63], v{V_L16}, {WS}, s{S_T0} offen")
        k(f"s_mov_b64 exec, -1")
```

```python
import numpy as np

MB = 1 << 20
WS_BYTES = 256 * MB
WS_KV = 0 * MB
WS_QX = 32 * MB
WS_KM = 48 * MB
WS_VM = 52 * MB
WS_MEMR = 56 * MB
WS_INBOX = 58 * MB
WS_MEML = 59 * MB
WS_STAMP = 60 * MB
WS_FLAGS = 61 * MB
FL_PROG = WS_FLAGS
FL_TEAM = WS_FLAGS + 4096
FL_CHAIN = WS_FLAGS + 8192
WS_BQK = 64 * MB
WS_BV = 70 * MB
WS_BO = 74 * MB
WS_PART = 80 * MB
WS_PW = 128 * MB

INBOX_SLOT = 80 * 2048
SENT = 0x7F817F81


def sparse_k(g, j):
    k = 8 * g + (j & 7) + 32 * (j >> 3)
    gA, p, half, low = k >> 4, (k >> 2) & 3, (k >> 1) & 1, k & 1
    return gA, half, 2 * p + low


def mem_d(g, j):
    gA, half, s = sparse_k(g, j)
    return 16 * gA + 8 * half + s


def o_e(mo, g, j):
    gA, half, s = sparse_k(g, j)
    return 32 * (2 * mo + half) + 16 * (s >> 2) + 4 * gA + (s & 3)


def mem_chunk_index():
    rows = np.zeros(512, dtype=np.int64)
    ds = np.zeros(512, dtype=np.int64)
    for lane in range(64):
        gA, rho = lane >> 4, lane & 15
        r, half = 2 * (rho >> 2) + (rho & 1), (rho >> 1) & 1
        for s in range(8):
            rows[lane * 8 + s] = r
            ds[lane * 8 + s] = 16 * gA + 8 * half + s
    return rows, ds


def k_frag_index():
    tok = np.zeros(4096, dtype=np.int64)
    e = np.zeros(4096, dtype=np.int64)
    for w in range(4):
        for g in range(4):
            for t in range(32):
                for s in range(8):
                    i = ((w * 4 + g) * 32 + t) * 8 + s
                    tok[i] = t
                    e[i] = 32 * w + 4 * g + (s >> 1) + 16 * (s & 1)
    return tok, e


def v_frag_index():
    tok = np.zeros(4096, dtype=np.int64)
    e = np.zeros(4096, dtype=np.int64)
    for w in range(4):
        for u in range(2):
            for hi in range(2):
                for e5 in range(32):
                    for s in range(8):
                        i = (((w * 2 + u) * 2 + hi) * 32 + e5) * 8 + s
                        b, beta = s >> 2, s & 3
                        tok[i] = 8 * beta + 4 * hi + 2 * u + b
                        e[i] = 32 * w + e5
    return tok, e


def km_frag_index():
    key = np.zeros(1024, dtype=np.int64)
    e = np.zeros(1024, dtype=np.int64)
    for w in range(4):
        for g in range(4):
            for t in range(8):
                for s in range(8):
                    i = ((w * 4 + g) * 8 + t) * 8 + s
                    key[i] = t
                    e[i] = 32 * w + 4 * g + (s >> 1) + 16 * (s & 1)
    return key, e


DBG_REG, DBG_OVF, DBG_INIT, DBG_BAR1, DBG_BAR2 = 8, 9, 10, 11, 12
```

```python
import math
from asmlib import vr, ur, sr, ar
from layout import *
from chain import S_WS, S_W, S_SPIN, S_T0, S_T1, S_T2, S_T3, S_TA, WS, OOB, fbits

S_WI = 8
S_DBG = 84
S_OUT = 88
S_WT = 92
S_X = 96
DBG, OUT, WT, XS = sr(S_DBG, 4), sr(S_OUT, 4), sr(S_WT, 4), sr(S_X, 4)
S_WB = 13
S_XO, S_XST, S_OO, S_OST, S_N, S_FL, S_IT, S_BUF, S_BUFD, S_LEFT = 14, 15, 16, 17, 18, 19, 20, 21, 22, 23
S_RING = 24
S_C = 25
S_M = 26
S_SEG, S_TEAM, S_J, S_WANT = 28, 29, 30, 31
S_U0, S_U1, S_U2, S_U3 = 32, 33, 34, 35
S_BLK = 44

V_LANE, V_L16, V_TR, V_S0, V_S1, V_XS = 0, 1, 2, 3, 4, 5
V_XR = 6
V_XA = 10
V_O0, V_O1, V_T0, V_T1, V_T2, V_T3 = 14, 15, 16, 17, 18, 19
WREG = 192
NEG = fbits(-1.0e30)


class Worker:
    def __init__(self, k, **opt):
        self.k = k
        self.opt = opt

    def spin(self):
        self.k(f"s_sub_u32 s{S_SPIN}, s{S_SPIN}, 1")
        self.k(f"s_cbranch_scc1 L_abort")

    def srd(self, s, karg, nbytes):
        k = self.k
        k(f"s_load_dwordx2 {sr(s, 2)}, s[0:1], {karg}")
        k("s_waitcnt lgkmcnt(0)")
        k(f"s_mov_b32 s{s + 2}, {nbytes}")
        k(f"s_mov_b32 s{s + 3}, 0x20000")

    def base_consts(self):
        k = self.k
        k(f"v_lshlrev_b32 v{V_L16}, 4, v{V_LANE}")
        k(f"s_lshl_b32 s{S_RING}, s{S_W}, 15")

    def tr_addr(self, colmap):
        k = self.k
        k(f"v_lshrrev_b32 v{V_T0}, 5, v{V_LANE}")
        k(f"v_lshlrev_b32 v{V_T0}, 9, v{V_T0}")
        k(f"v_and_b32 v{V_T1}, 12, v{V_LANE}")
        k(f"v_lshl_add_u32 v{V_T0}, v{V_T1}, 4, v{V_T0}")
        k(f"v_lshrrev_b32 v{V_T1}, 2, v{V_LANE}")
        k(f"v_and_b32 v{V_T1}, 4, v{V_T1}")
        k(f"v_and_or_b32 v{V_T1}, v{V_LANE}, 3, v{V_T1}")
        if colmap == "clamp":
            k(f"v_min_u32 v{V_T1}, 4, v{V_T1}")
        elif colmap == "wide":
            k(f"v_and_b32 v{V_T2}, 1, v{V_T1}")
            k(f"v_lshrrev_b32 v{V_T1}, 1, v{V_T1}")
            k(f"v_lshl_add_u32 v{V_T1}, v{V_T2}, 2, v{V_T1}")
        k(f"v_lshl_add_u32 v{V_T0}, v{V_T1}, 3, v{V_T0}")
        k(f"v_add_u32 v{V_TR}, s{S_RING}, v{V_T0}")

    def src_rows(self, dst, stride, rowmap):
        k = self.k
        if rowmap == "id":
            k(f"v_lshrrev_b32 v{V_T0}, 2, v{V_LANE}")
        else:
            mb, mh, add = (8, 4, 0) if rowmap == "perm" else (40, 20, 16)
            k(f"v_bfe_u32 v{V_T0}, v{V_LANE}, 2, 2")
            k(f"v_bfe_u32 v{V_T1}, v{V_LANE}, 4, 1")
            k(f"v_mad_u32_u24 v{V_T0}, v{V_T1}, {mb}, v{V_T0}")
            k(f"v_lshrrev_b32 v{V_T1}, 5, v{V_LANE}")
            k(f"v_mad_u32_u24 v{V_T0}, v{V_T1}, {mh}, v{V_T0}")
            if add:
                k(f"v_add_u32 v{V_T0}, {add}, v{V_T0}")
        k(f"v_mul_u32_u24 v{V_T0}, {stride}, v{V_T0}")
        k(f"v_and_b32 v{V_T1}, 3, v{V_LANE}")
        k(f"v_lshl_add_u32 v{dst}, v{V_T1}, 4, v{V_T0}")

    def load_weights(self, frags):
        k = self.k
        n = len(frags)

        def dma(i):
            v, c, _ = frags[i]
            k(f"s_add_u32 m0, s{S_RING}, {1024 * (i % 32)}")
            k(f"s_add_u32 s{S_T0}, s{S_WB}, {c}")
            k(f"buffer_load_dwordx4 v{v}, {WT}, s{S_T0} offen lds")

        k("s_waitcnt vmcnt(0) lgkmcnt(0)")
        k("s_barrier")
        for i in range(32):
            dma(i)
        for b in range(0, n, 8):
            left = min(n, b + 32) - (b + 8)
            k(f"s_waitcnt vmcnt({left})")
            for i in range(b, b + 8):
                d = frags[i][2]
                k(f"ds_read_b64_tr_b16 {ur(d, 2)}, v{V_TR} offset:{1024 * (i % 32)}")
                k(f"ds_read_b64_tr_b16 {ur(d + 2, 2)}, v{V_TR} offset:{1024 * (i % 32) + 256}")
                if i % 4 == 3:
                    k("s_waitcnt lgkmcnt(0)")
            for i in range(b + 32, min(n, b + 40)):
                dma(i)
        k("s_barrier")

    def x_consts(self, linear):
        k = self.k
        if linear:
            k(f"s_lshl_b32 s{S_T0}, s{S_W}, 10")
            k(f"v_add_u32 v{V_XS}, s{S_T0}, v{V_L16}")
            for q in range(4):
                k(f"v_add_u32 v{V_XR + q}, {1024 * q}, v{V_L16}")
            return
        k(f"s_lshl_b32 s{S_T0}, s{S_W}, 3")
        k(f"v_lshrrev_b32 v{V_T0}, 3, v{V_LANE}")
        k(f"v_add_u32 v{V_T0}, s{S_T0}, v{V_T0}")
        k(f"v_lshrrev_b32 v{V_T1}, 1, v{V_T0}")
        k(f"v_xor_b32 v{V_T1}, v{V_T1}, v{V_LANE}")
        k(f"v_and_b32 v{V_T1}, 7, v{V_T1}")
        k(f"v_mul_u32_u24 v{V_T0}, 1280, v{V_T0}")
        k(f"v_lshl_add_u32 v{V_XS}, v{V_T1}, 4, v{V_T0}")
        k(f"v_and_b32 v{V_T0}, 31, v{V_LANE}")
        k(f"v_bfe_u32 v{V_T1}, v{V_LANE}, 1, 3")
        k(f"v_lshrrev_b32 v{V_T2}, 5, v{V_LANE}")
        k(f"v_xor_b32 v{V_T1}, v{V_T1}, v{V_T2}")
        k(f"v_lshlrev_b32 v{V_T0}, 7, v{V_T0}")
        for q in range(4):
            k(f"v_xor_b32 v{V_T2}, {2 * q}, v{V_T1}")
            k(f"v_lshl_add_u32 v{V_XR + q}, v{V_T2}, 4, v{V_T0}")

    def x_dma(self, linear):
        srd, sfx, kbs = (WS, " sc1", 4096) if linear else (XS, "", 128)
        g = []
        for kb in range(10):
            g.append([f"s_add_u32 m0, s{S_BUFD}, {4096 * kb}",
                      f"s_add_u32 s{S_T0}, s{S_T1}, {kbs * kb}",
                      f"buffer_load_dwordx4 v{V_XS}, {srd}, s{S_T0} offen{sfx} lds"])
        return g

    def x_next(self):
        k = self.k
        k(f"s_cmp_gt_i32 s{S_LEFT}, 0")
        k(f"s_cselect_b32 s{S_T1}, s{S_XO}, {OOB:#x}")
        k(f"s_sub_u32 s{S_LEFT}, s{S_LEFT}, 1")
        k(f"s_add_u32 s{S_XO}, s{S_XO}, s{S_XST}")

    def buf_next(self, s, lo):
        k = self.k
        k(f"s_add_u32 s{s}, s{s}, 40960")
        k(f"s_cmp_ge_u32 s{s}, {3 * 40960}")
        k(f"s_cselect_b32 s{s}, s{lo}, s{s}" if lo is not None else f"s_cselect_b32 s{s}, 0, s{s}")

    def gemm_prologue(self, linear):
        k = self.k
        k(f"s_mov_b32 s{S_LEFT}, s{S_N}")
        k(f"s_lshl_b32 s{S_U0}, s{S_W}, 10")
        k(f"s_mov_b32 s{S_BUFD}, s{S_U0}")
        k(f"s_mov_b32 s{S_BUF}, 0")
        k(f"s_mov_b32 s{S_IT}, 0")
        for _ in range(2):
            self.x_next()
            for g in self.x_dma(linear):
                for x in g: k(x)
            self.buf_next(S_BUFD, S_U0)
        k("s_waitcnt vmcnt(10)")

    def gemm_loop(self, kind):
        k = self.k
        linear = kind == "out"
        swap = kind in ("v", "bv")
        ACC, XF, PK = [128, 144], 160, 176
        top = k.label("gemm")
        k(f"{top}:")
        k("s_waitcnt vmcnt(15)")
        k("s_barrier")
        for q in range(4):
            k(f"v_add_u32 v{V_XA + q}, s{S_BUF}, v{V_XR + q}")
        k(f"s_sub_u32 s{S_T2}, s{S_IT}, 1")
        k(f"s_max_i32 s{S_T2}, s{S_T2}, 0")
        k(f"v_mov_b32 v{V_T0}, s{S_T2}")

        def rd(ks):
            k(f"ds_read_b128 {vr(XF + 4 * (ks % 4), 4)}, v{V_XA + (ks & 3)} offset:{4096 * (ks >> 2)}")

        for ks in range(3):
            rd(ks)
        k("s_mov_b64 exec, 1")
        k(f"buffer_store_dword v{V_T0}, v{V_L16}, {WS}, s{S_FL} offen sc1")
        k("s_mov_b64 exec, -1")
        self.x_next()
        dm = self.x_dma(linear)
        for ks in range(40):
            k(f"s_waitcnt lgkmcnt({min(2, 39 - ks)})")
            for T in range(2):
                w, x = ur(WREG + 4 * (T * 40 + ks), 4), vr(XF + 4 * (ks % 4), 4)
                a, b = (x, w) if swap else (w, x)
                c = "0" if ks == 0 else vr(ACC[T], 16)
                k(f"v_mfma_f32_32x32x16_bf16 {vr(ACC[T], 16)}, {a}, {b}, {c}")
                if T == 0 and ks + 3 < 40:
                    rd(ks + 3)
                if T == 1 and ks % 3 == 0 and dm:
                    for x_ in dm.pop(0): k(x_)
        assert not dm
        self.buf_next(S_BUFD, S_U0)
        self.buf_next(S_BUF, None)
        k(f"s_add_u32 s{S_IT}, s{S_IT}, 1")
        for T in range(2):
            D, P = ACC[T], PK + 8 * T
            cv = lambda d, lo, hi: k(f"v_cvt_pk_bf16_f32 v{P + d}, v{D + lo}, v{D + hi}")
            if kind == "qk":
                for u in range(2):
                    for i in range(4):
                        cv(4 * u + i, 4 * u + i, 4 * u + 8 + i)
            elif swap:
                for u in range(2):
                    cv(4 * u, 2 * u, 4 + 2 * u)
                    cv(4 * u + 1, 8 + 2 * u, 12 + 2 * u)
                    cv(4 * u + 2, 2 * u + 1, 5 + 2 * u)
                    cv(4 * u + 3, 9 + 2 * u, 13 + 2 * u)
                if kind == "bv":
                    for i in range(8):
                        k(f"v_cndmask_b32 v{P + i}, v{P + i}, v{V_O1}, {sr(S_M, 2)}")
            else:
                for i in range(8 if kind == "out" else 6):
                    cv(i, 2 * i, 2 * i + 1)
            if kind in ("qk", "v", "bv"):
                for u in range(2):
                    k(f"buffer_store_dwordx4 {vr(P + 4 * u, 4)}, v{V_L16}, {WS}, s{S_OO} offen offset:{2048 * T + 1024 * u} sc1")
            elif kind == "bqk":
                k(f"buffer_store_dwordx4 {vr(P, 4)}, v{V_L16}, {WS}, s{S_OO} offen offset:{1280 * T} sc1")
                k(f"buffer_store_dwordx2 {vr(P + 4, 2)}, v{V_O0}, {WS}, s{S_OO} offen offset:{1280 * T + 1024} sc1")
            else:
                for u in range(2):
                    k(f"buffer_store_dwordx4 {vr(P + 4 * u, 4)}, v{V_O0}, {OUT}, s{S_OO} offen offset:{64 * T + 16 * u}")
        k(f"s_add_u32 s{S_OO}, s{S_OO}, s{S_OST}")
        k(f"s_cmp_lt_u32 s{S_IT}, s{S_N}")
        k(f"s_cbranch_scc1 {top}")

    def gemm_finish(self):
        k = self.k
        k("s_waitcnt vmcnt(0)")
        k("s_barrier")
        k(f"v_mov_b32 v{V_T0}, s{S_N}")
        k("s_mov_b64 exec, 1")
        k(f"buffer_store_dword v{V_T0}, v{V_L16}, {WS}, s{S_FL} offen sc1")
        k("s_mov_b64 exec, -1")

    def poll(self, srd, soff, want, mask=None, nd=1, sh=2):
        k = self.k
        lp, done = k.label("poll"), k.label("polled")
        k(f"s_cmp_lg_u32 s{S_W}, 0")
        k(f"s_cbranch_scc1 {done}")
        k(f"v_and_b32 v{V_T1}, {nd - 1}, v{V_LANE}")
        k(f"v_lshlrev_b32 v{V_T1}, {sh}, v{V_T1}")
        k(f"{lp}:")
        k(f"buffer_load_dword v{V_T0}, v{V_T1}, {srd}, {soff} offen sc1")
        k("s_waitcnt vmcnt(0)")
        if mask:
            k(f"v_and_b32 v{V_T0}, {mask:#x}, v{V_T0}")
        k(f"v_cmp_gt_u32 vcc, {want}, v{V_T0}")
        k(f"s_cbranch_vccz {done}")
        self.spin()
        k("s_sleep 2")
        k(f"s_branch {lp}")
        k(f"{done}:")
        k("s_barrier")

    def arrive(self, srd, soff):
        k = self.k
        skip = k.label("arr")
        k("s_waitcnt vmcnt(0)")
        k("s_barrier")
        k(f"s_cmp_lg_u32 s{S_W}, 0")
        k(f"s_cbranch_scc1 {skip}")
        k(f"v_mov_b32 v{V_T0}, 1")
        k("s_mov_b64 exec, 1")
        k(f"buffer_atomic_add v{V_T0}, v{V_L16}, {srd}, {soff} offen")
        k("s_mov_b64 exec, -1")
        k(f"{skip}:")

    def init_flags(self):
        k = self.k
        k(f"s_lshr_b32 s{S_T0}, s{S_WI}, 2")
        k(f"s_lshl_b32 s{S_T1}, s{S_T0}, 7")
        k(f"s_and_b32 s{S_T2}, s{S_WI}, 3")
        k(f"s_lshl_b32 s{S_T2}, s{S_T2}, 2")
        k(f"s_add_u32 s{S_T1}, s{S_T1}, s{S_T2}")
        k(f"s_add_u32 s{S_T1}, s{S_T1}, {FL_PROG}")
        k(f"s_lshl_b32 s{S_T2}, s{S_W}, 5")
        k(f"s_or_b32 s{S_T0}, s{S_T0}, s{S_T2}")
        k(f"s_cmp_lt_u32 s{S_T0}, 32")
        k(f"s_cselect_b32 s{S_FL}, s{S_T1}, {OOB:#x}")
        k(f"s_lshr_b32 s{S_T0}, s{S_WI}, 4")
        k(f"s_lshl_b32 s{S_T0}, s{S_T0}, 7")
        k(f"s_add_u32 s{S_TEAM}, s{S_T0}, {FL_TEAM}")
        k(f"s_and_b32 s{S_J}, s{S_WI}, 15")
        k(f"s_or_b32 s{S_T0}, s{S_J}, s{S_W}")
        k(f"s_cselect_b32 s{S_T1}, {OOB:#x}, s{S_TEAM}")
        k(f"v_mov_b32 v{V_T0}, 0")
        k("s_mov_b64 exec, 1")
        k(f"buffer_store_dword v{V_T0}, v{V_L16}, {WS}, s{S_FL} offen sc1")
        k(f"buffer_store_dword v{V_T0}, v{V_L16}, {WS}, s{S_T1} offen sc1")
        k("s_mov_b64 exec, -1")
        k(f"s_lshl_b32 s{S_T0}, s{S_WI}, 2")
        k(f"s_add_u32 s{S_U0}, s{S_T0}, s{S_W}")
        k(f"s_lshl_b32 s{S_T1}, s{S_U0}, 13")
        k(f"s_add_u32 s{S_T1}, s{S_T1}, {WS_MEMR}")
        k(f"s_sub_u32 s{S_T2}, s{S_U0}, 256")
        k(f"s_mul_i32 s{S_T3}, s{S_T2}, 5120")
        k(f"s_add_u32 s{S_T3}, s{S_T3}, {WS_INBOX}")
        k(f"s_cmp_lt_u32 s{S_U0}, 256")
        k(f"s_cselect_b32 s{S_T1}, s{S_T1}, s{S_T3}")
        k(f"s_sub_u32 s{S_T2}, s{S_U0}, 384")
        k(f"s_lshl_b32 s{S_T3}, s{S_T2}, 13")
        k(f"s_add_u32 s{S_T3}, s{S_T3}, {WS_MEML}")
        k(f"s_cmp_lt_u32 s{S_U0}, 384")
        k(f"s_cselect_b32 s{S_T1}, s{S_T1}, s{S_T3}")
        k(f"s_cmp_lt_u32 s{S_U0}, 392")
        k(f"s_cselect_b32 s{S_T1}, s{S_T1}, {OOB:#x}")
        for i in range(4):
            k(f"v_mov_b32 v{20 + i}, {SENT:#x}")
        for i in range(4):
            k(f"buffer_store_dwordx4 v[20:23], v{V_L16}, {WS}, s{S_T1} offen offset:{1024 * i} sc1")
        k(f"s_add_u32 s{S_T1}, s{S_T1}, 4096")
        k(f"buffer_store_dwordx4 v[20:23], v{V_L16}, {WS}, s{S_T1} offen sc1")
        k(f"s_sub_u32 s{S_T2}, s{S_U0}, 392")
        k(f"s_lshl_b32 s{S_T3}, s{S_T2}, 10")
        k(f"s_add_u32 s{S_T3}, s{S_T3}, {FL_CHAIN}")
        k(f"s_cmp_lt_u32 s{S_T2}, 2")
        k(f"s_cselect_b32 s{S_T1}, s{S_T3}, {OOB:#x}")
        k(f"buffer_store_dword v{V_T0}, v{V_L16}, {WS}, s{S_T1} offen sc1")
        self.srd(S_WT, 40, 4096 * 1280)
        k(f"v_lshlrev_b32 v{V_T1}, 7, v{V_LANE}")
        k(f"s_lshl_b32 s{S_T0}, s{S_U0}, 13")
        k(f"buffer_load_dword v24, v{V_T1}, {WT}, s{S_T0} offen")

    def report_init(self, ch):
        k = self.k
        nopr, skip = k.label("nopr"), k.label("noinit")
        k("s_waitcnt vmcnt(0)")
        k("s_barrier")
        k(f"s_cmp_lg_u32 s{S_W}, 0")
        k(f"s_cbranch_scc1 {skip}")
        k(f"s_mov_b32 s{S_U1}, 0")
        k(f"s_cmp_lg_u32 s{S_WI}, 191")
        k(f"s_cbranch_scc1 {nopr}")
        ch.probe_polarity(S_U1)
        k(f"{nopr}:")
        k(f"s_lshl_b32 s{S_U1}, s{S_U1}, 16")
        k(f"s_add_u32 s{S_U1}, s{S_U1}, 1")
        k(f"v_mov_b32 v{V_T0}, s{S_U1}")
        k("s_mov_b64 exec, 1")
        k(f"buffer_atomic_add v{V_T0}, v{V_L16}, {DBG}, {4 * DBG_INIT} offen")
        k("s_mov_b64 exec, -1")
        k(f"{skip}:")

    def phase_aqkv(self):
        k = self.k
        k(f"s_load_dwordx2 {sr(S_U0, 2)}, s[0:1], 16")
        k(f"s_load_dwordx2 {sr(S_U2, 2)}, s[0:1], 24")
        k(f"s_load_dwordx2 {sr(S_TA, 2)}, s[0:1], 32")
        self.srd(S_X, 0, 2048 * 1280)
        k(f"s_lshr_b32 s{S_T0}, s{S_WI}, 2")
        k(f"s_cmp_lt_u32 s{S_W}, 2")
        k(f"s_cselect_b32 s{S_WT}, s{S_U2}, s{S_TA}")
        k(f"s_cselect_b32 s{S_WT + 1}, s{S_U2 + 1}, s{S_TA + 1}")
        k(f"s_cselect_b32 s{S_SEG}, 0, 1")
        k(f"s_cmp_lt_u32 s{S_T0}, 32")
        k(f"s_cselect_b32 s{S_WT}, s{S_WT}, s{S_U0}")
        k(f"s_cselect_b32 s{S_WT + 1}, s{S_WT + 1}, s{S_U0 + 1}")
        k(f"s_cselect_b32 s{S_SEG}, s{S_SEG}, 0")
        k(f"s_mov_b32 s{S_WT + 2}, {640 * 8192}")
        k(f"s_mov_b32 s{S_WT + 3}, 0x20000")
        k(f"s_and_b32 s{S_T1}, s{S_W}, 1")
        k(f"s_lshl_b32 s{S_T1}, s{S_T1}, 7")
        k(f"s_lshl_b32 s{S_T2}, s{S_T0}, 8")
        k(f"s_add_u32 s{S_T1}, s{S_T1}, s{S_T2}")
        k(f"s_sub_u32 s{S_T2}, s{S_T0}, 32")
        k(f"s_lshl_b32 s{S_T2}, s{S_T2}, 2")
        k(f"s_add_u32 s{S_T2}, s{S_T2}, s{S_W}")
        k(f"s_lshl_b32 s{S_T3}, s{S_T2}, 7")
        k(f"s_cmp_lt_u32 s{S_T0}, 32")
        k(f"s_cselect_b32 s{S_WB}, s{S_T1}, s{S_T3}")
        k(f"s_lshl_b32 s{S_T2}, s{S_T2}, 12")
        k(f"s_add_u32 s{S_T2}, s{S_T2}, {WS_QX}")
        k(f"s_lshl_b32 s{S_T1}, s{S_T0}, 2")
        k(f"s_add_u32 s{S_T1}, s{S_T1}, s{S_W}")
        k(f"s_lshl_b32 s{S_T1}, s{S_T1}, 12")
        k(f"s_add_u32 s{S_T1}, s{S_T1}, {WS_KV}")
        k(f"s_cmp_lt_u32 s{S_T0}, 32")
        k(f"s_cselect_b32 s{S_OO}, s{S_T1}, s{S_T2}")
        k(f"s_cselect_b32 s{S_T3}, 19, 18")
        k(f"s_and_b32 s{S_T1}, s{S_WI}, 3")
        k(f"s_lshl_b32 s{S_T2}, s{S_T1}, s{S_T3}")
        k(f"s_add_u32 s{S_OO}, s{S_OO}, s{S_T2}")
        k(f"s_lshl_b32 s{S_OST}, 4, s{S_T3}")
        k(f"s_mul_i32 s{S_XO}, s{S_T1}, 40960")
        k(f"s_mov_b32 s{S_XST}, {4 * 40960}")
        k(f"s_mov_b32 s{S_N}, 16")
        self.tr_addr("id")
        self.src_rows(V_S0, 8192, "id")
        self.x_consts(False)
        self.load_weights([(V_S0, ks * 16 * 8192 + 64 * T, WREG + 4 * (T * 40 + ks)) for ks in range(40) for T in range(2)])
        self.mark(1)
        self.gemm_prologue(False)
        lv, le = k.label("aq_v"), k.label("aq_e")
        k(f"s_cmp_eq_u32 s{S_SEG}, 1")
        k(f"s_cbranch_scc1 {lv}")
        self.gemm_loop("qk")
        k(f"s_branch {le}")
        k(f"{lv}:")
        self.gemm_loop("v")
        k(f"{le}:")
        self.gemm_finish()
        k(f"s_mov_b32 s{S_FL}, {OOB:#x}")

    def phase_bqkv(self):
        k = self.k
        k("; ---- sliding-window branch: q, k, v")
        self.srd(S_X, 56, 2048 * 1280)
        self.srd(S_WT, 64, 640 * 3840)
        k(f"s_lshr_b32 s{S_T0}, s{S_WI}, 4")
        k(f"s_lshl_b32 s{S_T1}, s{S_T0}, 2")
        k(f"s_add_u32 s{S_T1}, s{S_T1}, s{S_W}")
        k(f"s_mul_i32 s{S_WB}, s{S_T1}, 80")
        k(f"s_lshr_b32 s{S_SEG}, s{S_T0}, 2")
        k(f"s_and_b32 s{S_T1}, s{S_T1}, 15")
        k(f"s_and_b32 s{S_T2}, s{S_WI}, 15")
        k(f"s_mul_i32 s{S_XO}, s{S_T2}, 40960")
        k(f"s_mov_b32 s{S_XST}, {16 * 40960}")
        k(f"s_mov_b32 s{S_N}, 4")
        k(f"s_lshl_b32 s{S_T2}, s{S_T2}, 4")
        k(f"s_add_u32 s{S_T1}, s{S_T1}, s{S_T2}")
        k(f"s_mul_i32 s{S_T2}, s{S_T1}, 2560")
        k(f"s_mul_i32 s{S_T3}, s{S_SEG}, {3 * MB}")
        k(f"s_add_u32 s{S_T2}, s{S_T2}, s{S_T3}")
        k(f"s_add_u32 s{S_T2}, s{S_T2}, {WS_BQK}")
        k(f"s_lshl_b32 s{S_T1}, s{S_T1}, 12")
        k(f"s_add_u32 s{S_T1}, s{S_T1}, {WS_BV}")
        k(f"s_mov_b32 s{S_OST}, {16 * 32 * 1280}")
        k(f"s_cmp_eq_u32 s{S_SEG}, 2")
        k(f"s_cselect_b32 s{S_OO}, s{S_T1}, s{S_T2}")
        k(f"s_cselect_b32 s{S_OST}, {16 * 32 * 2048}, s{S_OST}")
        k(f"s_mov_b32 s{S_M}, 0xfff00000")
        k(f"s_mov_b32 s{S_M + 1}, 0xfff00000")
        k(f"v_mov_b32 v{V_O1}, 0x3f803f80")
        k(f"v_lshlrev_b32 v{V_T0}, 3, v{V_LANE}")
        k(f"v_and_b32 v{V_T1}, 32, v{V_LANE}")
        k(f"v_lshl_add_u32 v{V_O0}, v{V_T1}, 25, v{V_T0}")
        self.tr_addr("clamp")
        self.src_rows(V_S0, 3840, "id")
        self.load_weights([(V_S0, ks * 16 * 3840 + 40 * T, WREG + 4 * (T * 40 + ks)) for ks in range(40) for T in range(2)])
        self.mark(3)
        self.gemm_prologue(False)
        lv, le = k.label("bq_v"), k.label("bq_e")
        k(f"s_cmp_eq_u32 s{S_SEG}, 2")
        k(f"s_cbranch_scc1 {lv}")
        self.gemm_loop("bqk")
        k(f"s_branch {le}")
        k(f"{lv}:")
        self.gemm_loop("bv")
        k(f"{le}:")

    def out_addr(self, dst):
        k = self.k
        k(f"v_and_b32 v{V_T0}, 31, v{V_LANE}")
        k(f"v_mul_u32_u24 v{V_T0}, 2560, v{V_T0}")
        k(f"v_and_b32 v{V_T1}, 32, v{V_LANE}")
        k(f"v_add_u32 v{dst}, v{V_T0}, v{V_T1}")

    def phase_bout_load(self):
        k = self.k
        k("; ---- sliding-window branch: output projection")
        self.srd(S_WT, 72, 640 * 1280)
        k(f"s_lshr_b32 s{S_T0}, s{S_WI}, 6")
        k(f"s_lshl_b32 s{S_T0}, s{S_T0}, 2")
        k(f"s_add_u32 s{S_T0}, s{S_T0}, s{S_W}")
        k(f"s_lshl_b32 s{S_WB}, s{S_T0}, 7")
        k(f"s_and_b32 s{S_T1}, s{S_WI}, 63")
        k(f"s_mul_i32 s{S_XO}, s{S_T1}, 40960")
        k(f"s_add_u32 s{S_XO}, s{S_XO}, {WS_BO}")
        k(f"s_mul_i32 s{S_T1}, s{S_T1}, {32 * 2560}")
        k(f"s_add_u32 s{S_T1}, s{S_T1}, s{S_WB}")
        k(f"s_add_u32 s{S_T1}, s{S_T1}, 1280")
        k(f"s_cmp_lt_u32 s{S_T0}, 10")
        k(f"s_cselect_b32 s{S_OO}, s{S_T1}, {OOB:#x}")
        k(f"s_mov_b32 s{S_OST}, 0")
        k(f"s_mov_b32 s{S_XST}, 0")
        k(f"s_mov_b32 s{S_N}, 1")
        self.out_addr(V_O0)
        self.tr_addr("wide")
        self.src_rows(V_S0, 1280, "perm")
        self.src_rows(V_S1, 1280, "last")
        self.x_consts(True)
        fr = []
        for ks in range(40):
            hq, n = divmod(ks, 5)
            for T in range(2):
                fr.append((V_S0 if n < 4 else V_S1, (80 * hq + (20 * n if n < 4 else 0)) * 1280 + 64 * T, WREG + 4 * (T * 40 + ks)))
        self.load_weights(fr)

    def phase_bout(self):
        self.gemm_prologue(True)
        self.gemm_loop("out")

    def bias_tile(self, dst, op):
        k = self.k
        k(f"v_and_b32 v{V_T0}, 31, v{V_LANE}")
        k(f"v_lshrrev_b32 v{V_T1}, 5, v{V_LANE}")
        k(f"v_lshlrev_b32 v{V_T1}, 2, v{V_T1}")
        k(f"v_sub_u32 v{V_T0}, v{V_T0}, v{V_T1}")
        k(f"v_mov_b32 v{V_T1}, {NEG:#x}")
        for i in range(16):
            k(f"v_cmp_{op}_i32 vcc, {8 * (i >> 2) + (i & 3)}, v{V_T0}")
            k(f"v_cndmask_b32 v{dst + i}, v{V_T1}, 0, vcc")

    def pack_p(self, dst, D):
        k = self.k
        for u in range(2):
            for n, (lo, hi) in enumerate(((2 * u, 4 + 2 * u), (8 + 2 * u, 12 + 2 * u), (2 * u + 1, 5 + 2 * u), (9 + 2 * u, 13 + 2 * u))):
                k(f"v_cvt_pk_bf16_f32 v{dst + 4 * u + n}, v{D + lo}, v{D + hi}")

    def half_reduce(self, op, r, t):
        k = self.k
        k(f"v_mov_b32 v{t}, v{r}")
        k(f"v_permlane32_swap_b32 v{r}, v{t}")
        k(f"v_{op}_f32 v{r}, v{r}, v{t}")

    def phase_battn(self):
        k = self.k
        k("; ---- sliding-window attention: one segment x four heads per wave")
        done = k.label("battn_done")
        k(f"s_cmp_ge_u32 s{S_WI}, 128")
        k(f"s_cbranch_scc1 {done}")
        S, BC, BW, O, Q, PK, OP = 20, 164, 180, 196, [212, 218], [224, 232], 240
        VA, VB = V_S0, V_S1
        k(f"s_lshr_b32 s{S_SEG}, s{S_WI}, 3")
        k(f"s_lshl_b32 s{S_SEG}, s{S_SEG}, 2")
        k(f"s_add_u32 s{S_SEG}, s{S_SEG}, s{S_W}")
        k(f"s_and_b32 s{S_U3}, s{S_WI}, 7")
        k(f"s_mov_b32 s{S_C}, {fbits(math.log2(math.e) / math.sqrt(20.0)):#x}")
        for j in range(9):
            k(f"s_add_i32 s{S_T0}, s{S_SEG}, {j - 8}")
            k(f"s_lshl_b32 s{S_T1}, s{S_T0}, 3")
            k(f"s_add_u32 s{S_T1}, s{S_T1}, s{S_U3}")
            k(f"s_lshl_b32 s{S_T1}, s{S_T1}, 2")
            k(f"s_cmp_ge_i32 s{S_T0}, 0")
            k(f"s_cselect_b32 s{S_BLK + j}, s{S_T1}, 0x100000")
        k(f"v_lshlrev_b32 v{V_T0}, 3, v{V_LANE}")
        k(f"v_and_b32 v{V_T1}, 32, v{V_LANE}")
        k(f"v_lshl_add_u32 v{VA}, v{V_T1}, 25, v{V_T0}")
        k(f"v_and_b32 v{V_T0}, 31, v{V_LANE}")
        k(f"v_subrev_u32 v{V_T2}, 4, v{V_T0}")
        k(f"v_cmp_gt_u32 vcc, 20, v{V_T0}")
        k(f"v_cndmask_b32 v{V_T0}, v{V_T2}, v{V_T0}, vcc")
        k(f"v_add_u32 v{V_T0}, v{V_T0}, v{V_T1}")
        k(f"v_lshlrev_b32 v{VB}, 4, v{V_T0}")
        self.bias_tile(BC, "le")
        self.bias_tile(BW, "gt")
        k(f"s_mov_b32 s{S_M}, 0")
        k(f"s_mov_b32 s{S_M + 1}, -1")

        def areg(b, j, what):
            base = 126 * b + 14 * j
            return base + {"k0": 0, "k1": 4, "v0": 6, "v1": 10}[what]

        def loads(n):
            b = n & 1
            k(f"s_mul_i32 s{S_T0}, s{S_BLK + 8}, 1280")
            k(f"s_add_u32 s{S_T0}, s{S_T0}, {WS_BQK + 1280 * n}")
            k(f"buffer_load_dwordx4 {vr(Q[b], 4)}, v{V_L16}, {WS}, s{S_T0} offen sc1")
            k(f"buffer_load_dwordx2 {vr(Q[b] + 4, 2)}, v{VA}, {WS}, s{S_T0} offen offset:1024 sc1")
            for j in range(9):
                k(f"s_mul_i32 s{S_T0}, s{S_BLK + j}, 1280")
                k(f"s_add_u32 s{S_T0}, s{S_T0}, {WS_BQK + 3 * MB + 1280 * n}")
                k(f"buffer_load_dwordx4 {ar(areg(b, j, 'k0'), 4)}, v{V_L16}, {WS}, s{S_T0} offen sc1")
                k(f"buffer_load_dwordx2 {ar(areg(b, j, 'k1'), 2)}, v{VA}, {WS}, s{S_T0} offen offset:1024 sc1")
            for j in range(9):
                k(f"s_lshl_b32 s{S_T0}, s{S_BLK + j}, 11")
                k(f"s_add_u32 s{S_T0}, s{S_T0}, {WS_BV + 2048 * n}")
                k(f"buffer_load_dwordx4 {ar(areg(b, j, 'v0'), 4)}, v{VB}, {WS}, s{S_T0} offen sc1")
                k(f"buffer_load_dwordx4 {ar(areg(b, j, 'v1'), 4)}, v{VB}, {WS}, s{S_T0} offen offset:1024 sc1")

        k(f"s_mul_i32 s{S_OO}, s{S_SEG}, 40960")
        k(f"s_mul_i32 s{S_T0}, s{S_U3}, 5120")
        k(f"s_add_u32 s{S_OO}, s{S_OO}, s{S_T0}")
        k(f"s_add_u32 s{S_OO}, s{S_OO}, {WS_BO}")
        loads(0)
        for n in range(4):
            b = n & 1
            k(f"s_waitcnt vmcnt({1 if n else 0})")
            if n < 3:
                loads(n + 1)
            for j in range(9):
                c = vr(BW, 16) if j == 0 else vr(BC, 16) if j == 8 else "0"
                k(f"v_mfma_f32_32x32x16_bf16 {vr(S + 16 * j, 16)}, {ar(areg(b, j, 'k0'), 4)}, {vr(Q[b], 4)}, {c}")
                k(f"v_mfma_f32_32x32x8_bf16 {vr(S + 16 * j, 16)}, {ar(areg(b, j, 'k1'), 2)}, {vr(Q[b] + 4, 2)}, {vr(S + 16 * j, 16)}")
            full = k.label("full")
            for j in range(8):
                k(f"s_cmp_ge_u32 s{S_SEG}, {8 - j}")
                k(f"s_cbranch_scc1 {full}")
                for i in range(16):
                    k(f"v_mov_b32 v{S + 16 * j + i}, {NEG:#x}")
            k(f"{full}:")
            k(f"v_max_f32 v{V_T0}, v{S}, v{S + 1}")
            for i in range(2, 144, 2):
                k(f"v_max3_f32 v{V_T0}, v{V_T0}, v{S + i}, v{S + i + 1}")
            self.half_reduce("max", V_T0, V_T1)
            for j in range(9):
                D = S + 16 * j
                for i in range(16):
                    k(f"v_sub_f32 v{D + i}, v{D + i}, v{V_T0}")
                for i in range(16):
                    k(f"v_mul_f32 v{D + i}, s{S_C}, v{D + i}")
                for i in range(16):
                    k(f"v_exp_f32 v{D + i}, v{D + i}")
                self.pack_p(PK[j & 1], D)
                for u in range(2):
                    c = "0" if j == 0 and u == 0 else vr(O, 16)
                    k(f"v_mfma_f32_32x32x16_bf16 {vr(O, 16)}, {ar(areg(b, j, 'v%d' % u), 4)}, {vr(PK[j & 1] + 4 * u, 4)}, {c}")
            k(f"v_rcp_f32 v{V_T0}, v{O + 12}")
            for i in range(12):
                k(f"v_mul_f32 v{O + i}, v{O + i}, v{V_T0}")
            for i in range(4):
                k(f"v_cvt_pk_bf16_f32 v{OP + i}, v{O + 2 * i}, v{O + 2 * i + 1}")
            X = OP + 4 + 2 * (n >> 1)
            if n & 1 == 0:
                k(f"v_cvt_pk_bf16_f32 v{X}, v{O + 8}, v{O + 9}")
                k(f"v_cvt_pk_bf16_f32 v{X + 1}, v{O + 10}, v{O + 11}")
            else:
                k(f"s_mov_b64 exec, {sr(S_M, 2)}")
                k(f"v_cvt_pk_bf16_f32 v{X}, v{O + 8}, v{O + 9}")
                k(f"v_cvt_pk_bf16_f32 v{X + 1}, v{O + 10}, v{O + 11}")
                k("s_mov_b64 exec, -1")
            k(f"buffer_store_dwordx4 {vr(OP, 4)}, v{V_L16}, {WS}, s{S_OO} offen offset:{1024 * n} sc1")
        k(f"s_add_u32 s{S_OO}, s{S_OO}, 4096")
        k(f"buffer_store_dwordx4 {vr(OP + 4, 4)}, v{V_L16}, {WS}, s{S_OO} offen sc1")
        k(f"{done}:")

    def phase_ao(self):
        k = self.k
        k("; ---- token attention and output projection of the recurrent branch")
        self.srd(S_WT, 40, 4096 * 1280)
        k(f"s_mul_i32 s{S_WB}, s{S_J}, {256 * 1280}")
        k(f"s_mul_i32 s{S_T0}, s{S_W}, 320")
        k(f"s_add_u32 s{S_WB}, s{S_WB}, s{S_T0}")
        self.tr_addr("wide")
        self.src_rows(V_S0, 1280, "perm")
        self.load_weights([(V_S0, ks * 16 * 1280 + 64 * T, WREG + 4 * (T * 16 + ks)) for ks in range(16) for T in range(5)])
        ACC = 112
        VM, ID, VKM, VVM, VOW = 2, 6, 10, 11, 12
        Q, K, V, BC = 20, 52, 84, 176
        SX, SM, O, PK = 112, 128, 144, 100
        self.out_addr(V_O0)
        k(f"s_mov_b32 s{S_C}, {fbits(math.log2(math.e) / math.sqrt(128.0)):#x}")
        k(f"v_and_b32 v{V_T0}, 31, v{V_LANE}")
        k(f"v_and_b32 v{V_T1}, 32, v{V_LANE}")
        k(f"v_lshlrev_b32 v{V_T2}, 4, v{V_T0}")
        k(f"v_lshl_add_u32 v{V_T3}, v{V_T1}, 2, v{V_T2}")
        k(f"v_cmp_gt_u32 vcc, 8, v{V_T0}")
        k(f"v_mov_b32 v{VKM}, 0x40000000")
        k(f"v_cndmask_b32 v{VKM}, v{VKM}, v{V_T3}, vcc")
        k(f"v_lshrrev_b32 v{V_T1}, 2, v{V_T1}")
        k(f"v_add_u32 v{VVM}, v{V_T1}, v{V_T2}")
        k(f"s_lshl_b32 s{S_T0}, s{S_W}, 12")
        k(f"v_add_u32 v{VOW}, s{S_T0}, v{V_L16}")
        k(f"v_lshrrev_b32 v{V_T1}, 3, v{V_LANE}")
        k(f"v_xor_b32 v{V_T1}, v{V_T1}, v{V_LANE}")
        k(f"v_and_b32 v{V_T1}, 4, v{V_T1}")
        k(f"v_and_or_b32 v{V_T1}, v{V_LANE}, 16, v{V_T1}")
        k(f"v_bfe_u32 v{V_T2}, v{V_LANE}, 3, 1")
        k(f"v_bfe_u32 v{V_T3}, v{V_LANE}, 1, 1")
        k(f"v_lshl_add_u32 v{V_T2}, v{V_T2}, 1, v{V_T3}")
        k(f"v_add_u32 v{V_T1}, v{V_T1}, v{V_T2}")
        k(f"v_and_b32 v{V_T2}, 1, v{V_LANE}")
        k(f"v_lshlrev_b32 v{V_T2}, 4, v{V_T2}")
        k(f"v_mov_b32 v{V_T3}, 0x3f80")
        k(f"v_lshlrev_b32 v{V_T2}, v{V_T2}, v{V_T3}")
        for i in range(4):
            k(f"v_cmp_eq_u32 vcc, {i}, v{V_T1}")
            k(f"v_cndmask_b32 v{ID + i}, 0, v{V_T2}, vcc")
        k(f"s_lshr_b32 s{S_SEG}, s{S_WI}, 4")
        k(f"s_mov_b32 s{S_WANT}, 0")
        k(f"s_lshl_b32 s{S_FL}, s{S_J}, 7")
        k(f"s_add_u32 s{S_FL}, s{S_FL}, {FL_CHAIN}")
        self.poll(DBG, 4 * DBG_INIT, 192, mask=0xffff)
        self.mark(9)
        top = k.label("ao")
        k(f"{top}:")
        k(f"s_lshl_b32 s{S_T0}, s{S_SEG}, 4")
        k(f"s_add_u32 s{S_U1}, s{S_T0}, s{S_J}")
        k(f"s_lshl_b32 s{S_T0}, s{S_U1}, 1")
        k(f"s_lshr_b32 s{S_T1}, s{S_W}, 1")
        k(f"s_add_u32 s{S_U0}, s{S_T0}, s{S_T1}")
        k(f"s_lshl_b32 s{S_T0}, s{S_U0}, 13")
        k(f"s_add_u32 s{S_T0}, s{S_T0}, {WS_QX}")
        k(f"s_lshl_b32 s{S_T1}, s{S_U0}, 14")
        k(f"s_add_u32 s{S_T1}, s{S_T1}, {WS_KV}")
        for f in range(8):
            if f == 4:
                k(f"s_add_u32 s{S_T0}, s{S_T0}, 4096")
                k(f"s_add_u32 s{S_T1}, s{S_T1}, 4096")
            k(f"buffer_load_dwordx4 {vr(Q + 4 * f, 4)}, v{V_L16}, {WS}, s{S_T0} offen offset:{1024 * (f & 3)} sc1")
            k(f"buffer_load_dwordx4 {vr(K + 4 * f, 4)}, v{V_L16}, {WS}, s{S_T1} offen offset:{1024 * (f & 3)} sc1")
        k(f"s_and_b32 s{S_U2}, s{S_W}, 1")
        k(f"s_lshl_b32 s{S_T0}, s{S_U2}, 12")
        k(f"s_add_u32 s{S_T1}, s{S_T1}, s{S_T0}")
        k(f"s_add_u32 s{S_T1}, s{S_T1}, 4096")
        for f in range(4):
            k(f"buffer_load_dwordx4 {vr(V + 4 * f, 4)}, v{V_L16}, {WS}, s{S_T1} offen offset:{1024 * f} sc1")
        self.bias_tile(BC, "le")
        for f in range(8):
            k(f"s_waitcnt vmcnt({18 - 2 * f})")
            c = vr(BC, 16) if f == 0 else vr(SX, 16)
            k(f"v_mfma_f32_32x32x16_bf16 {vr(SX, 16)}, {vr(K + 4 * f, 4)}, {vr(Q + 4 * f, 4)}, {c}")
        k(f"s_add_u32 s{S_T2}, s{S_SEG}, 1")
        self.poll(WS, f"s{S_FL}", f"s{S_T2}", nd=4, sh=4)
        k(f"s_lshl_b32 s{S_T0}, s{S_U0}, 11")
        k(f"s_add_u32 s{S_T1}, s{S_T0}, {WS_VM}")
        k(f"s_add_u32 s{S_T0}, s{S_T0}, {WS_KM}")
        k(f"s_lshl_b32 s{S_T2}, s{S_U2}, 10")
        k(f"s_add_u32 s{S_T1}, s{S_T1}, s{S_T2}")
        for f in range(8):
            k(f"buffer_load_dwordx4 {vr(K + 4 * f, 4)}, v{VKM}, {WS}, s{S_T0} offen offset:{256 * f} sc1")
        for t in range(2):
            k(f"buffer_load_dwordx2 {vr(VM + 2 * t, 2)}, v{VVM}, {WS}, s{S_T1} offen offset:{512 * t} sc1")
        k(f"v_max_f32 v{V_T0}, v{SX}, v{SX + 1}")
        for i in range(2, 16, 2):
            k(f"v_max3_f32 v{V_T0}, v{V_T0}, v{SX + i}, v{SX + i + 1}")
        for f in range(8):
            k(f"s_waitcnt vmcnt({9 - f})")
            c = "0" if f == 0 else vr(SM, 16)
            k(f"v_mfma_f32_32x32x16_bf16 {vr(SM, 16)}, {vr(K + 4 * f, 4)}, {vr(Q + 4 * f, 4)}, {c}")
        k(f"v_max3_f32 v{V_T0}, v{V_T0}, v{SM}, v{SM + 1}")
        k(f"v_max3_f32 v{V_T0}, v{V_T0}, v{SM + 2}, v{SM + 3}")
        self.half_reduce("max", V_T0, V_T1)
        for i in range(20):
            k(f"v_sub_f32 v{SX + i}, v{SX + i}, v{V_T0}")
        for i in range(20):
            k(f"v_mul_f32 v{SX + i}, s{S_C}, v{SX + i}")
        for i in range(20):
            k(f"v_exp_f32 v{SX + i}, v{SX + i}")
        self.pack_p(PK, SX)
        k(f"v_cvt_pk_bf16_f32 v{PK + 8}, v{SM}, v{SM + 1}")
        k(f"v_cvt_pk_bf16_f32 v{PK + 9}, v{SM + 2}, v{SM + 3}")
        k("s_waitcnt vmcnt(0)")
        adds = [f"v_add_f32 v{V_T0}, v{SX}, v{SX + 1}"] + [f"v_add_f32 v{V_T0}, v{V_T0}, v{SX + i}" for i in range(2, 20)]
        for t in range(2):
            for u in range(3):
                if u < 2:
                    c = "0" if u == 0 else vr(O + 16 * t, 16)
                    k(f"v_mfma_f32_32x32x16_bf16 {vr(O + 16 * t, 16)}, {vr(V + 8 * t + 4 * u, 4)}, {vr(PK + 4 * u, 4)}, {c}")
                else:
                    k(f"v_mfma_f32_32x32x8_bf16 {vr(O + 16 * t, 16)}, {vr(VM + 2 * t, 2)}, {vr(PK + 8, 2)}, {vr(O + 16 * t, 16)}")
                for _ in range(5):
                    if adds: k(adds.pop(0))
        self.half_reduce("add", V_T0, V_T1)
        k(f"v_rcp_f32 v{V_T0}, v{V_T0}")
        for g in range(4):
            for i in range(8):
                k(f"v_mul_f32 v{O + 8 * g + i}, v{O + 8 * g + i}, v{V_T0}")
            for i in range(4):
                k(f"v_cvt_pk_bf16_f32 v{Q + 4 * g + i}, v{O + 8 * g + 2 * i}, v{O + 8 * g + 2 * i + 1}")
            k(f"ds_write_b128 v{VOW}, {vr(Q + 4 * g, 4)} offset:{1024 * g}")
        k("s_waitcnt lgkmcnt(0)")
        k("s_barrier")
        XF = K
        for ks in range(2):
            k(f"ds_read_b128 {vr(XF + 4 * ks, 4)}, v{V_L16} offset:{1024 * ks}")
        for ks in range(16):
            k(f"s_waitcnt lgkmcnt({min(1, 15 - ks)})")
            for T in range(5):
                c = "0" if ks == 0 else vr(ACC + 16 * T, 16)
                k(f"v_mfma_f32_32x32x16_bf16 {vr(ACC + 16 * T, 16)}, {ur(WREG + 4 * (T * 16 + ks), 4)}, {vr(XF + 4 * (ks % 3), 4)}, {c}")
                if T == 0 and ks + 2 < 16:
                    k(f"ds_read_b128 {vr(XF + 4 * ((ks + 2) % 3), 4)}, v{V_L16} offset:{1024 * (ks + 2)}")
        k(f"s_mul_i32 s{S_T0}, s{S_U1}, 40960")
        k(f"s_mul_i32 s{S_T1}, s{S_W}, 10240")
        k(f"s_add_u32 s{S_T0}, s{S_T0}, s{S_T1}")
        k(f"s_add_u32 s{S_T0}, s{S_T0}, {WS_PART}")
        for f in range(10):
            for i in range(4):
                k(f"v_cvt_pk_bf16_f32 v{Q + 4 * f + i}, v{ACC + 8 * f + 2 * i}, v{ACC + 8 * f + 2 * i + 1}")
            if f in (4, 8):
                k(f"s_add_u32 s{S_T0}, s{S_T0}, 4096")
            k(f"buffer_store_dwordx4 {vr(Q + 4 * f, 4)}, v{V_L16}, {WS}, s{S_T0} offen offset:{1024 * (f & 3)} sc1")
        self.arrive(WS, f"s{S_TEAM}")
        k(f"s_add_u32 s{S_WANT}, s{S_WANT}, 16")
        nored = k.label("ao_nored")
        self.poll(WS, f"s{S_TEAM}", f"s{S_WANT}")
        k(f"s_lshl_b32 s{S_T2}, s{S_W}, 4")
        k(f"s_add_u32 s{S_T2}, s{S_T2}, s{S_J}")
        k(f"s_cmp_ge_u32 s{S_T2}, 40")
        k(f"s_cbranch_scc1 {nored}")
        k(f"s_mul_i32 s{S_T0}, s{S_SEG}, {16 * 40960}")
        k(f"s_lshl_b32 s{S_T1}, s{S_T2}, 10")
        k(f"s_add_u32 s{S_T0}, s{S_T0}, s{S_T1}")
        k(f"s_add_u32 s{S_T0}, s{S_T0}, {WS_PART}")
        for p in range(16):
            k(f"buffer_load_dwordx4 {vr(Q + 4 * p, 4)}, v{V_L16}, {WS}, s{S_T0} offen sc1")
            k(f"s_add_u32 s{S_T0}, s{S_T0}, 40960")
        k(f"s_lshr_b32 s{S_T0}, s{S_T2}, 1")
        k(f"s_lshl_b32 s{S_T0}, s{S_T0}, 6")
        k(f"s_and_b32 s{S_T1}, s{S_T2}, 1")
        k(f"s_lshl_b32 s{S_T1}, s{S_T1}, 4")
        k(f"s_add_u32 s{S_T0}, s{S_T0}, s{S_T1}")
        k(f"s_mul_i32 s{S_T1}, s{S_SEG}, {32 * 2560}")
        k(f"s_add_u32 s{S_T0}, s{S_T0}, s{S_T1}")
        for p in range(16):
            k(f"s_waitcnt vmcnt({15 - p})")
            c = "0" if p == 0 else vr(ACC, 16)
            k(f"v_mfma_f32_32x32x16_bf16 {vr(ACC, 16)}, {vr(ID, 4)}, {vr(Q + 4 * p, 4)}, {c}")
        for i in range(4):
            k(f"v_cvt_pk_bf16_f32 v{PK + i}, v{ACC + 2 * i}, v{ACC + 2 * i + 1}")
        k(f"buffer_store_dwordx4 {vr(PK, 4)}, v{V_O0}, {OUT}, s{S_T0} offen")
        k(f"{nored}:")
        k(f"s_add_u32 s{S_SEG}, s{S_SEG}, 12")
        k(f"s_cmp_lt_u32 s{S_SEG}, 64")
        k(f"s_cbranch_scc1 {top}")

    def mark(self, i):
        if not self.timing:
            return
        k = self.k
        if i == 0:
            k(f"s_mov_b32 s{S_TA}, s78")
        else:
            k(f"s_memrealtime {sr(S_TA, 2)}")
            k("s_waitcnt lgkmcnt(0)")
        k(f"v_mov_b32 v{V_T0}, s{S_TA}")
        k(f"s_lshl_b32 s{S_T0}, s3, 6")
        k(f"s_add_u32 s{S_T0}, s{S_T0}, {WS_STAMP + 65536 + 4 * i}")
        k("s_mov_b64 exec, 1")
        k(f"buffer_store_dword v{V_T0}, v{V_L16}, {WS}, s{S_T0} offen")
        k("s_mov_b64 exec, -1")
        k("s_waitcnt vmcnt(0)")

    def program(self, ch):
        k = self.k
        self.base_consts()
        self.mark(0)
        self.init_flags()
        self.report_init(ch)
        if self.opt.get("noworkers"):
            k("s_endpgm")
        self.phase_aqkv()
        self.mark(2)
        self.phase_bqkv()
        self.mark(4)
        self.arrive(DBG, 4 * DBG_BAR1)
        self.poll(DBG, 4 * DBG_BAR1, 192)
        self.mark(5)
        self.phase_battn()
        self.mark(6)
        self.arrive(DBG, 4 * DBG_BAR2)
        self.phase_bout_load()
        self.poll(DBG, 4 * DBG_BAR2, 192)
        self.mark(7)
        self.phase_bout()
        self.mark(8)
        self.phase_ao()
        self.mark(10)
```

```python
import sys
from asmlib import *
from layout import *
import chain as C
from chain import Chain, S_A, S_H, S_W, S_STEP, S_SPIN, S_T0, S_T1, S_T2, S_T3, S_TA, WS, OOB
import worker as W
from worker import Worker, S_WI, S_DBG, S_OUT, DBG

NAME = "concat_heads__memory_aug_recurrent_mem_tr__sliding_block__prompt"
XA, XB = 5, 7
SPIN = 1 << 16
S_ROLE = 3


def build(name=NAME + "_kernel", stamps=None, fakexcc=False, timing=False, **opt):
    copt = dict(x4=1, d1=128, d1b=48, d2=192, dk=128, rearly=0)
    copt.update(opt)
    k = Asm()
    ch = Chain(k, stamps=stamps, **copt)
    wk = Worker(k, **opt)
    k(f"{name}:")
    k("s_cmp_ge_u32 s2, 256")
    k("s_cbranch_scc1 L_exit")
    if timing:
        k("s_memrealtime s[78:79]")
    k("s_load_dwordx2 s[4:5], s[0:1], 96")
    k(f"s_load_dwordx2 {sr(S_DBG, 2)}, s[0:1], 88")
    k("v_lshrrev_b32 v1, 6, v0")
    k(f"v_readfirstlane_b32 s{S_W}, v1")
    k("v_and_b32 v0, 63, v0")
    k(f"s_mov_b32 s{S_SPIN}, {SPIN}")
    k(f"s_getreg_b32 s{S_T2}, hwreg(HW_REG_XCC_ID)")
    if fakexcc:
        k(f"s_lshr_b32 s{S_T2}, s{S_T2}, 1")
        k(f"s_lshl_b32 s{S_T2}, s{S_T2}, 1")
    k(f"s_and_b32 s{S_T2}, s{S_T2}, 7")
    k("s_waitcnt lgkmcnt(0)")
    k(f"s_mov_b32 s6, {WS_BYTES}")
    k("s_mov_b32 s7, 0x20000")
    k(f"s_mov_b32 s{S_DBG + 2}, 256")
    k(f"s_mov_b32 s{S_DBG + 3}, 0x20000")
    k("v_mov_b32 v3, 0")
    k(f"s_cmp_lg_u32 s{S_W}, 0")
    k("s_cbranch_scc1 L_role")
    k(f"s_lshl_b32 s{S_T0}, s{S_T2}, 2")
    k("v_mov_b32 v1, 1")
    k("v_mov_b32 v2, 1")
    k("s_mov_b64 exec, 1")
    k(f"buffer_atomic_add v1, v3, {DBG}, s{S_T0} offen sc0")
    k("s_waitcnt vmcnt(0)")
    k(f"buffer_atomic_add v2, v3, {DBG}, {4 * DBG_REG} offen")
    k(f"v_readfirstlane_b32 s{S_T1}, v1")
    k("s_mov_b64 exec, -1")
    k(f"s_lshl_b32 s{S_ROLE}, s{S_T2}, 5")
    k(f"s_add_u32 s{S_ROLE}, s{S_ROLE}, s{S_T1}")
    k(f"s_cmp_lt_u32 s{S_T1}, 32")
    k("s_cbranch_scc1 L_have")
    k("v_mov_b32 v1, 1")
    k("s_mov_b64 exec, 1")
    k(f"buffer_atomic_add v1, v3, {DBG}, {4 * DBG_OVF} offen sc0")
    k("s_waitcnt vmcnt(0)")
    k(f"v_readfirstlane_b32 s{S_T1}, v1")
    k("s_mov_b64 exec, -1")
    k("v_lshlrev_b32 v4, 2, v0")
    k("L_ovf:")
    wk.spin()
    k(f"buffer_load_dword v1, v3, {DBG}, {4 * DBG_REG} offen sc1")
    k("s_waitcnt vmcnt(0)")
    k("v_cmp_gt_u32 vcc, 256, v1")
    k("s_cbranch_vccnz L_ovf")
    k(f"buffer_load_dword v1, v4, {DBG}, 0 offen sc1")
    k("s_waitcnt vmcnt(0)")
    for x in range(8):
        k(f"v_readlane_b32 s{S_T0}, v1, {x}")
        k(f"s_min_u32 s{S_T0}, s{S_T0}, 32")
        k(f"s_add_u32 s{S_ROLE}, s{S_T0}, s{S_T1}")
        k(f"s_cmp_lt_u32 s{S_ROLE}, 32")
        k(f"s_cselect_b32 s{S_T3}, 1, 0")
        k(f"s_sub_u32 s{S_T1}, s{S_ROLE}, 32")
        k(f"s_add_u32 s{S_ROLE}, s{S_ROLE}, {32 * x}")
        k(f"s_cmp_eq_u32 s{S_T3}, 1")
        k("s_cbranch_scc1 L_have")
    k("L_have:")
    k(f"v_mov_b32 v1, s{S_ROLE}")
    k("ds_write_b32 v3, v1")
    k("s_waitcnt lgkmcnt(0)")
    k("L_role:")
    k("s_barrier")
    k("ds_read_b32 v1, v3")
    k("s_waitcnt lgkmcnt(0)")
    k(f"v_readfirstlane_b32 s{S_ROLE}, v1")
    k("s_barrier")
    k(f"s_and_b32 s{S_ROLE}, s{S_ROLE}, 255")
    k(f"s_lshr_b32 s{S_T0}, s{S_ROLE}, 5")
    k(f"s_cmp_eq_u32 s{S_T0}, {XA}")
    k("s_cbranch_scc1 L_chain")
    k(f"s_cmp_eq_u32 s{S_T0}, {XB}")
    k("s_cbranch_scc1 L_chain")
    k("s_branch L_worker")
    k("L_exit:")
    k("s_endpgm")

    k("L_chain:")
    k(f"s_cmp_eq_u32 s{S_T0}, {XB}")
    k(f"s_cselect_b32 s{S_A}, 1, 0")
    k(f"s_and_b32 s{S_H}, s{S_ROLE}, 31")
    k("s_load_dwordx2 s[88:89], s[0:1], 16")
    k("s_load_dwordx2 s[92:93], s[0:1], 24")
    k("s_load_dwordx2 s[96:97], s[0:1], 32")
    k("s_load_dwordx2 s[80:81], s[0:1], 40")
    k(f"s_mov_b32 s{S_STEP}, 0")
    if stamps:
        k(f"s_mov_b32 s{C.S_STAMP + 4}, 0")
        k(f"s_mov_b64 {sr(C.S_STAMP, 2)}, 0")
        k(f"s_mov_b64 {sr(C.S_STAMP + 2, 2)}, 0")
    k("s_waitcnt lgkmcnt(0)")
    for s in (88, 92, 96, 80):
        k(f"s_mov_b32 s{s + 2}, {640 * 8192}")
        k(f"s_mov_b32 s{s + 3}, 0x20000")
    if timing:
        k("s_memrealtime s[100:101]")
    ch.load_weights(88, 92, 96, 80)
    if timing:
        k("s_memrealtime s[98:99]")
    k("s_load_dwordx2 s[88:89], s[0:1], 8")
    k("s_waitcnt lgkmcnt(0)")
    k("s_mov_b32 s90, 10240")
    k("s_mov_b32 s91, 0x20000")
    ch.mem0_piece(88)
    k(f"v_lshrrev_b32 v15, 2, v{C.V_L16}")
    k("L_hs:")
    ch.spin()
    k(f"buffer_load_dword v62, v15, {DBG}, 0 offen sc1")
    k("s_waitcnt vmcnt(0)")
    k(f"v_readlane_b32 s77, v62, {DBG_INIT}")
    k(f"s_and_b32 s{S_T0}, s77, 0xffff")
    k(f"s_cmp_lt_u32 s{S_T0}, 192")
    k("s_cbranch_scc1 L_hs")
    k(f"v_readlane_b32 s{S_T0}, v62, {DBG_REG}")
    k(f"s_cmp_lt_u32 s{S_T0}, 256")
    k("s_cbranch_scc1 L_hs")
    k(f"buffer_load_dword v62, v15, {DBG}, 0 offen sc1")
    k("s_lshr_b32 s77, s77, 16")
    k(f"s_and_b32 s77, s77, 1")
    if opt.get("pol"):
        k("s_xor_b32 s77, s77, 1")
    ch.remote_offsets(77)
    k("s_waitcnt vmcnt(0)")
    k(f"v_readlane_b32 s{S_T0}, v62, {XA}")
    k(f"v_readlane_b32 s{S_T1}, v62, {XB}")
    k(f"s_cmp_eq_u32 s{S_A}, 0")
    k(f"s_cselect_b32 s77, s{S_T0}, s{S_T1}")
    k(f"s_cmp_eq_u32 s{C.S_RED}, 0")
    k("s_cbranch_scc1 L_np")
    ch.piece_store(80, C.S_MLW, " sc1")
    ch.piece_store(80, C.S_MRW, " sc1")
    k("L_np:")
    k(f"s_mov_b32 s{S_T3}, 0")
    ch.ready_poll(60, 61)
    k(f"s_cmp_lg_u32 s{S_W}, 3")
    k("s_cbranch_scc1 L_nkx")
    ch.kx_all()
    k("L_nkx:")
    ch.pre_step()
    if timing:
        k("s_memrealtime s[96:97]")
        k(f"s_mov_b32 s{S_SPIN}, {SPIN}")
    k("s_waitcnt lgkmcnt(0)")
    k("s_cmp_lt_u32 s77, 32")
    k("s_cbranch_scc1 L_step_s")
    ch.loop("f", "")
    k("s_branch L_cend")
    ch.names = []
    ch.loop("s", " sc1")
    k("L_cend:")
    if timing:
        ch.write_stamps()
        k("s_memrealtime s[94:95]")
        k("s_waitcnt lgkmcnt(0)")
        for i, s in enumerate((78, 98, 96, 94, 100)):
            k(f"v_mov_b32 v{64 + i}, s{s}")
        k(f"s_lshl_b32 s{S_T0}, s{S_ROLE}, 6")
        k(f"s_add_u32 s{S_T0}, s{S_T0}, {WS_STAMP + 65536}")
        k("s_mov_b64 exec, 1")
        k(f"buffer_store_dwordx4 v[64:67], v{C.V_L16}, {WS}, s{S_T0} offen")
        k(f"buffer_store_dword v68, v{C.V_L16}, {WS}, s{S_T0} offen offset:16")
    k("L_abort:")
    k("s_endpgm")
    k("L_cabort:")
    if timing:
        k(f"s_add_u32 s{C.S_STAMP + 4}, s{S_STEP}, 0xdead0000")
        ch.write_stamps()
    k("s_endpgm")

    k("L_worker:")
    k(f"s_cmp_eq_u32 s{S_T0}, 6")
    k(f"s_cselect_b32 s{S_T1}, 32, 0")
    k(f"s_sub_u32 s{S_WI}, s{S_ROLE}, s{S_T1}")
    wk.srd(S_OUT, 80, 2048 * 2560)
    wk.timing = timing
    wk.program(ch)
    k("s_endpgm")
    k.fix_hazards(verbose="-v" in sys.argv)
    head = f"""; Recurrent-memory transformer block and sliding-window attention block in one persistent launch.
; @launch grid=(256,1,1) block=(256,1,1) lds=163840
.amdgcn_target "amdgcn-amd-amdhsa--gfx950"
.text
.globl {name}
.p2align 8
.type {name},@function
"""
    tail = f""".section .rodata,"a"
.p2align 6
.amdhsa_kernel {name}
  .amdhsa_next_free_vgpr 512
  .amdhsa_next_free_sgpr 102
  .amdhsa_accum_offset 256
  .amdhsa_group_segment_fixed_size 0
  .amdhsa_kernarg_size 104
  .amdhsa_user_sgpr_count 2
  .amdhsa_user_sgpr_kernarg_segment_ptr 1
  .amdhsa_system_sgpr_workgroup_id_x 1
  .amdhsa_float_denorm_mode_32 3
.end_amdhsa_kernel
"""
    return head + k.text() + tail, ch.names


if __name__ == "__main__":
    txt, _ = build()
    open(f"cdna_kernels/{NAME}.s", "w").write(txt)
    print(len(txt), "bytes")
```

```python
import re

TRANS = ("v_exp_", "v_log_", "v_rcp_", "v_rsq_", "v_sqrt_", "v_sin_", "v_cos_")


def vr(n, cnt=1):
    return f"v{n}" if cnt == 1 else f"v[{n}:{n + cnt - 1}]"


def ar(n, cnt=1):
    return f"a{n}" if cnt == 1 else f"a[{n}:{n + cnt - 1}]"


def sr(n, cnt=1):
    return f"s{n}" if cnt == 1 else f"s[{n}:{n + cnt - 1}]"


def ur(n, cnt=1):
    if n < 256:
        assert n + cnt <= 256
        return vr(n, cnt)
    return ar(n - 256, cnt)


_REG = re.compile(r"^(-|\|)?(abs\()?([vas])(\d+|\[(\d+):(\d+)\])\)?\|?$")


def regs_of(op):
    op = op.strip()
    if op == "vcc":
        return {"vcc_lo", "vcc_hi"}
    if op in ("vcc_lo", "vcc_hi", "m0", "exec_lo", "exec_hi"):
        return {op}
    if op == "exec":
        return {"exec_lo", "exec_hi"}
    m = _REG.match(op)
    if not m:
        return set()
    k = m.group(3)
    if m.group(5) is not None:
        return {f"{k}{i}" for i in range(int(m.group(5)), int(m.group(6)) + 1)}
    return {f"{k}{int(m.group(4))}"}


def is_vec(r):
    return r[0] in "va" and r[1].isdigit()


class Ins:
    def __init__(self, text):
        self.text = text
        body = text.split(";")[0].strip()
        parts = body.split(None, 1)
        self.mn = parts[0]
        rest = parts[1] if len(parts) > 1 else ""
        ops = [o.strip() for o in re.split(r",(?![^\[]*\])", rest)] if rest else []
        self.mods = ""
        if ops:
            last = ops[-1].split(None, 1)
            ops[-1] = last[0]
            self.mods = last[1] if len(last) > 1 else ""
        self.ops = ops
        mn = self.mn
        self.w = set()
        self.r = set()
        self.kind = "other"
        self.passes = 0
        self.srcA = self.srcB = self.srcC = set()
        self.data = set()
        R = [regs_of(o) for o in ops]
        allr = lambda xs: set().union(*xs) if xs else set()
        if mn.startswith("v_mfma") or mn.startswith("v_smfmac"):
            self.kind = "mfma"
            self.passes = 8 if "32x32" in mn else 4
            self.w = R[0]
            self.srcA, self.srcB = R[1], R[2]
            if mn.startswith("v_smfmac"):
                self.srcC = R[0]
                self.srcB = R[2] | R[3]
            else:
                self.srcC = R[3]
            self.r = self.srcA | self.srcB | self.srcC
        elif mn.startswith("v_"):
            self.kind = "valu"
            if mn.startswith("v_nop"):
                pass
            elif mn.startswith("v_permlane") or mn.startswith("v_swap"):
                self.w = R[0] | R[1]
                self.r = R[0] | R[1]
            elif re.match(r"v_(add|sub|subrev|addc|subb|subbrev)_co_", mn) or mn.startswith("v_mad_u64") or mn.startswith("v_div_scale"):
                self.w = R[0] | R[1]
                self.r = allr(R[2:])
            else:
                self.w = R[0]
                self.r = allr(R[1:])
                if mn.startswith(("v_fmac", "v_mac", "v_dot2c", "v_writelane", "v_pk_fmac")) or "_dpp" in mn or "_sdwa" in mn:
                    self.r |= R[0]
                if mn.startswith("v_cmpx"):
                    self.w |= {"exec_lo", "exec_hi"}
        elif mn.startswith("ds_"):
            self.kind = "ds"
            if mn.startswith(("ds_read", "ds_bpermute", "ds_permute", "ds_swizzle")) or "_rtn" in mn:
                self.w = R[0]
                self.r = allr(R[1:])
            else:
                self.r = allr(R)
        elif mn.startswith(("buffer_", "global_")):
            self.kind = "vmem"
            mods = self.mods.split()
            if mn.startswith("buffer_load") and "lds" in mods or mn.startswith("global_load_lds"):
                self.r = allr(R) | {"m0"}
            elif "_load" in mn:
                self.w = R[0]
                self.r = allr(R[1:])
            elif mn.startswith("buffer_atomic"):
                self.r = allr(R)
                if "sc0" in mods:
                    self.w = R[0]
            elif mn.startswith("global_atomic"):
                if "sc0" in mods:
                    self.w = R[0]
                    self.r = allr(R[1:])
                else:
                    self.r = allr(R)
            else:
                self.r = allr(R)
                if mn.endswith(("x3", "x4")):
                    self.data = R[0] if mn.startswith("buffer_") else R[1]
        elif mn.startswith("s_"):
            self.kind = "salu"
            if mn.startswith(("s_cmp", "s_cbranch", "s_branch", "s_waitcnt", "s_nop", "s_barrier", "s_endpgm", "s_sleep", "s_setprio", "s_bitcmp", "s_setreg")):
                self.r = allr(R)
            else:
                self.w = R[0] if R else set()
                self.r = allr(R[1:])
                if "saveexec" in mn:
                    self.w = self.w | {"exec_lo", "exec_hi"}
        self.is_dpp = "_dpp" in mn or "row_" in self.mods or "quad_perm" in self.mods
        self.is_trans = mn.startswith(TRANS)

    def states(self):
        if self.mn == "s_nop":
            return int(self.ops[0], 0) + 1
        return 1


def required(p, c):
    need = 0
    if p.kind == "valu":
        pv = {x for x in p.w if is_vec(x)}
        ps = p.w - pv
        if c.kind == "mfma" and pv & c.r:
            need = max(need, 2)
        if c.kind == "valu":
            if c.is_dpp and pv & c.r:
                need = max(need, 2)
            if c.mn.startswith("v_permlane") and pv & c.r:
                need = max(need, 2)
            if c.mn.startswith(("v_readlane", "v_readfirstlane")) and pv & c.r:
                need = max(need, 1)
            if p.is_trans and not c.is_trans and pv & c.r:
                need = max(need, 1)
            if ("op_sel" in p.mods or "_sdwa" in p.mn) and pv & (c.r | c.w):
                need = max(need, 1)
            if ps & c.r:
                need = max(need, 4 if c.mn.startswith(("v_readlane", "v_writelane", "v_div_fmas")) else 2)
            if "exec_lo" in ps:
                need = max(need, 5)
        if c.kind == "mfma" and "exec_lo" in ps:
            need = max(need, 4)
        if c.kind == "vmem" and ps & c.r:
            need = max(need, 5)
    if p.kind == "mfma":
        big = 12 if p.passes == 8 else 8
        if c.kind == "mfma":
            if p.w & (c.srcA | c.srcB):
                need = max(need, big)
            if p.w & c.srcC:
                if not (p.w == c.srcC and p.passes == c.passes):
                    need = max(need, big - 2)
            elif p.w & c.w and not (p.w == c.w and p.passes == c.passes):
                need = max(need, big - 2)
        elif c.kind in ("valu", "ds", "vmem"):
            if p.w & (c.r | c.w):
                need = max(need, big)
            if c.kind == "valu" and p.srcC & c.w:
                need = max(need, p.passes - 1)
    if p.kind == "vmem" and p.data and p.data & c.w:
        need = max(need, 2 if c.kind in ("valu", "mfma") else 1)
    if p.kind == "salu" and "m0" in p.w and "m0" in c.r and c.kind in ("vmem", "ds"):
        need = max(need, 1)
    return need


class Asm:
    def __init__(self):
        self.items = []
        self.uid = 0

    def __call__(self, text):
        for ln in text.split("\n"):
            s = ln.strip()
            if not s:
                continue
            if s.startswith((";", ".", "//")) and not s.endswith(":"):
                self.items.append(("t", s))
            elif s.endswith(":"):
                self.items.append(("l", s[:-1]))
            else:
                self.items.append(("i", Ins(s)))

    def label(self, base):
        self.uid += 1
        return f"L_{base}_{self.uid}"

    def fix_hazards(self, verbose=False):
        total = 0
        for _ in range(4):
            items = self.items
            lab = {v: i for i, (k, v) in enumerate(items) if k == "l"}
            jumps = {}
            for i, (k, v) in enumerate(items):
                if k == "i" and v.mn.startswith(("s_cbranch", "s_branch")):
                    jumps.setdefault(lab[v.ops[0]], []).append(i)
            pad = {}

            def back(c, pos, dist, seen):
                short = 0
                stack = [(pos, dist)]
                while stack:
                    q, d = stack.pop()
                    preds = []
                    if q in jumps:
                        preds += jumps[q]
                    if q > 0:
                        k, v = items[q - 1]
                        if not (k == "i" and v.mn in ("s_branch", "s_endpgm", "s_setpc_b64")):
                            preds.append(q - 1)
                    for j in preds:
                        if seen.get(j, 99) <= d:
                            continue
                        seen[j] = d
                        k, v = items[j]
                        if k != "i":
                            stack.append((j, d))
                            continue
                        short = max(short, required(v, c) - d)
                        nd = d + v.states() + pad.get(j, 0)
                        if nd < 12:
                            stack.append((j, nd))
                return short

            for i, (k, v) in enumerate(items):
                if k == "i" and v.kind in ("valu", "mfma", "ds", "vmem"):
                    s = back(v, i, 0, {})
                    if s > 0:
                        pad[i] = s
            if not pad:
                break
            out = []
            for i, it in enumerate(items):
                if i in pad:
                    if verbose:
                        print(f"hazard: s_nop {pad[i]-1} before {it[1].text}")
                    out.append(("i", Ins(f"s_nop {pad[i] - 1} ; hz")))
                    total += 1
                out.append(it)
            self.items = out
        return total

    def text(self):
        out = []
        for k, v in self.items:
            if k == "i":
                out.append("  " + v.text)
            elif k == "l":
                out.append(v + ":")
            else:
                out.append(v)
        return "\n".join(out) + "\n"


def estimate(items, lds_lat=56, verbose=False):
    t = 0
    mpipe = 0
    vfree = 0
    mdone = 0
    vdone = 0
    vccrdy = 0
    lds = []
    lds_last = 0
    out = []
    for k, v in items:
        if k != "i":
            if k == "t":
                out.append((t, v))
            continue
        cost = 4
        if v.kind == "mfma":
            big = v.passes == 8
            t = max(t, mpipe, vfree)
            mpipe = t + (32 if big else 16)
            vfree = t + (12 if v.mn.startswith("v_smfmac") else 8)
            mdone = t + (44 if big else 28)
            vdone = max(vdone, t + 8)
        elif v.kind == "valu":
            t = max(t, vfree)
            if v.mn.startswith("v_pk_"):
                t = max(t, mdone)
            if v.is_trans or v.mn.startswith("v_permlane"):
                cost = 8
            vfree = t + cost
            vdone = t + cost + 8
            if "vcc_lo" in v.w:
                vccrdy = t + 20
        elif v.kind in ("ds", "vmem"):
            t = max(t, vdone)
            if v.kind == "ds":
                occ = 16 if "b128" in v.mn else 8
                if "write" in v.mn:
                    occ = 48 if "b128" in v.mn else 24 if ("b64" in v.mn or "write2" in v.mn) else 16
                lds_last = max(t + lds_lat - 16 + occ, lds_last + occ)
                lds.append(lds_last)
                if "write" in v.mn:
                    cost = 14
        elif v.mn == "s_waitcnt":
            m = re.search(r"lgkmcnt\((\d+)\)", v.text)
            if m:
                n = int(m.group(1))
                while len(lds) > n:
                    t = max(t, lds.pop(0))
        elif v.mn == "s_nop":
            cost = 4 * v.states()
        elif v.mn.startswith("s_cbranch"):
            if "vcc" in v.mn:
                t = max(t, vccrdy)
            cost = 12
        elif v.mn == "s_barrier":
            cost = 18
        if verbose:
            print(f"{t:6d} {v.text}")
        t += cost
    return t, out
```

```python
import math
import struct
from asmlib import vr, ur, sr
from layout import *

N_LDSU = 17
LDS_WAVE_W = N_LDSU * 2048
LDS_MEM = 0
LDS_KX = LDS_MEM + 10240
LDS_QK = LDS_KX + 8192
LDS_JUNK = LDS_QK + 8 * 544
LDS_W = 24576
assert LDS_JUNK + 256 <= LDS_W and LDS_W + 4 * LDS_WAVE_W <= 163840
OOB = 0x80000000

S_WS = 4
S_A, S_H, S_W, S_STEP, S_SPIN = 8, 9, 10, 11, 12
S_PUB, S_INB = 13, 15
S_MLR, S_MLW, S_MRR, S_MRW = 16, 17, 18, 19
S_KX, S_VX, S_KVM = 20, 21, 22
S_RED = 23
S_C = 24
S_SENT = 25
S_B0 = 26
S_SEL = 28
S_T0, S_T1, S_T2, S_T3 = 36, 37, 38, 39
S_TA = 40
S_MLB = 42
S_DLT = 43
S_STAMP = 44
S_MEMM = 51
S_RS0, S_RS1, S_RS2 = 52, 53, 54
S_W1280 = 55
S_W4096 = 56
S_ONES = 57
S_LIM = 58
S_3F80 = 59
S_REDM = 60
S_RHO = 61
S_LIM2 = 62
S_KVT = 63
S_CNT = 64
S_CL, S_CR = 65, 66
S_SENT2 = 68
S_KVX = 70
S_W2M = 72
S_KVS, S_READY, S_PRG = 74, 75, 76
S_ONES2 = 82
S_KXM, S_KXO = 50, 14
S_RM0, S_RO = 53, 57
S_OOB = 84
S_PB = 92

V_L16, V_IDX, V_QW, V_QR, V_KR, V_OW, V_PUB, V_RST = 0, 1, 2, 3, 4, 5, 6, 7
V_KXS, V_VXS, V_KVM, V_VW, V_WL, V_MW = 8, 9, 10, 11, 12, 13
V_UP = V_L16
V_SM = 13
ACC = {"q0": 16, "q1": 20, "k0": 24, "k1": 28, "v0": 32, "v1": 36}
F = [40, 44, 48]
U = [52, 60]
VX = 68
MATS = ["q0", "q1", "k0", "k1", "v0", "v1"]
WS = sr(S_WS, 4)
ROR8 = "row_ror:8 row_mask:0xf bank_mask:0xf"


def unit_index(u):
    if u[0] == "o":
        return 60 + 2 * u[1] + u[2]
    return MATS.index(u[0]) * 10 + u[1]


ALL_UNITS = [(m, c) for m in MATS for c in range(10)] + [("o", t, mo) for t in range(5) for mo in range(2)]
LDS_UNITS = [(m, c) for c in range(4) for m in ("v0", "v1")] + [("o", t, mo) for t in (0, 1, 3, 4) for mo in range(2)] + [("v0", 4)]
REG_UNITS = [u for u in ALL_UNITS if u not in LDS_UNITS]
assert len(LDS_UNITS) == N_LDSU and len(REG_UNITS) == 53
REG_OF = {u: 88 + 8 * i for i, u in enumerate(REG_UNITS)}
LDS_OF = {u: 2048 * i for i, u in enumerate(LDS_UNITS)}


def fbits(x):
    return struct.unpack("<I", struct.pack("<f", x))[0]


T2REG = [44, 46, 48, 78, 90, 98, 100]


class Chain:
    def __init__(self, k, stamps=None, nsteps=64, **opt):
        self.opt = opt
        self.k = k
        self.stamps = stamps
        self.nsteps = nsteps
        self.names = []

    def stamp(self, name):
        self.names.append(name)
        self.k(f"; @{name}")
        t2 = self.opt.get("t2")
        if t2 and name in t2:
            self.k(f"s_memtime {sr(T2REG[t2.index(name)], 2)}")
        if not self.stamps or name not in self.stamps:
            return
        self.k(f"s_memtime {sr(S_STAMP + 2 * self.stamps.index(name), 2)}")

    def smf(self, acc, a, b):
        self.k(f"v_smfmac_f32_16x16x64_bf16 {vr(acc, 4)}, {vr(a, 4)}, {ur(b, 8)}, v{V_IDX}")

    def upart(self, dst, u, hi):
        self.k(f"ds_read_b128 {vr(dst + 4 * hi, 4)}, v{V_WL} offset:{LDS_OF[u] + 1024 * hi}")

    def lds_unit(self, dst, u):
        self.upart(dst, u, 0)
        self.upart(dst, u, 1)

    def frag(self, dst, c):
        self.k(f"ds_read_b128 {vr(dst, 4)}, v{V_UP} offset:{1024 * c}")

    def kxpart(self, dst, tau, m):
        off = LDS_KX - LDS_MEM + (tau >> 1) * 4096 + (tau & 1) * 1024 + 2048 * m
        self.k(f"ds_read_b128 {vr(dst + 4 * m, 4)}, v{V_UP} offset:{off}")

    def sample(self, remote, r):
        self.k(f"buffer_load_dwordx2 {vr(r, 2)}, v{V_SM}, {WS}, s{S_MRR if remote else S_MLW} offen sc1")

    def mem_dma(self, remote):
        k = self.k
        so = S_MRR if remote else S_MLW
        k(f"s_mov_b32 m0, {LDS_MEM + 5120 * remote}")
        k(f"s_add_u32 s{S_T0}, s{so}, 4096")
        for c in range(4):
            k(f"buffer_load_dwordx4 v{V_L16}, {WS}, s{so} offen offset:{1024 * c} sc1 lds")
        k(f"s_mov_b32 m0, {LDS_MEM + 5120 * remote + 4096}")
        k(f"buffer_load_dwordx4 v{V_L16}, {WS}, s{S_T0} offen sc1 lds")

    def cmp_nan(self, r):
        self.k(f"v_cmp_{'f' if self.opt.get('free') else 'u'}_f32 vcc, v{r}, v{r + 1}")

    def kx_all(self):
        k = self.k
        for tau in range(4):
            k(f"s_mov_b32 m0, {LDS_KX + (tau >> 1) * 4096 + (tau & 1) * 1024 - 128 * tau}")
            k(f"buffer_load_dwordx4 v{V_KXS}, {WS}, s{S_KX} offen offset:{128 * tau} sc1 lds")
            k(f"buffer_load_dwordx4 v{V_KXS}, {WS}, s{S_KX} offen offset:{128 * tau + 2048} sc1 lds")

    def chk5(self, r4, r1, t):
        c = "f" if self.opt.get("free") else "u"
        return [f"v_fma_f32 v{t}, v{r4}, v{r4 + 1}, v{r4 + 2}",
                f"v_add_f32 v{t}, v{t}, v{r4 + 3}",
                f"v_cmp_{c}_f32 vcc, v{t}, v{r1}"]

    def exact_check(self, regs):
        k = self.k
        k(f"s_mov_b64 {sr(S_TA, 2)}, 0")
        for r in regs:
            k(f"v_cmp_eq_u32 vcc, s{S_SENT}, v{r}")
            k(f"s_or_b64 {sr(S_TA, 2)}, {sr(S_TA, 2)}, vcc")

    def spin(self):
        self.k(f"s_sub_u32 s{S_SPIN}, s{S_SPIN}, 1")
        self.k(f"s_cbranch_scc1 L_cabort")

    def consts(self):
        k = self.k
        T = 20
        g, c, t0, t1, t2 = T, T + 1, T + 2, T + 3, T + 4
        k(f"v_lshrrev_b32 v{g}, 4, v0")
        k(f"v_and_b32 v{c}, 15, v0")
        k(f"v_and_b32 v{t0}, 2, v{c}")
        k(f"v_cmp_ne_u32 vcc, 0, v{t0}")
        k(f"v_mov_b32 v{t1}, 0x44444444")
        k(f"v_mov_b32 v{t2}, 0xeeeeeeee")
        k(f"v_cndmask_b32 v{V_IDX}, v{t1}, v{t2}, vcc")
        k(f"s_lshl_b32 s{S_T0}, s{S_W}, 6")
        k(f"s_add_u32 s{S_T0}, s{S_T0}, {LDS_QK}")
        k(f"v_mul_u32_u24 v{t0}, 1088, v{g}")
        k(f"v_lshl_add_u32 v{t0}, v{c}, 2, v{t0}")
        k(f"v_add_u32 v{V_QW}, s{S_T0}, v{t0}")
        k(f"s_lshl_b32 s{S_T0}, s{S_W}, 9")
        k(f"s_add_u32 s{S_T0}, s{S_T0}, {LDS_MEM + 5120}")
        k(f"v_lshlrev_b32 v{t0}, 2, v{g}")
        k(f"v_lshl_add_u32 v{t0}, v{c}, 4, v{t0}")
        k(f"v_add_u32 v{V_VW}, s{S_T0}, v{t0}")
        k(f"v_and_b32 v{t0}, 7, v{c}")
        k(f"v_mul_u32_u24 v{t0}, 544, v{t0}")
        k(f"v_lshlrev_b32 v{t1}, 1, v{c}")
        k(f"v_xor_b32 v{t1}, v{t1}, v{c}")
        k(f"v_and_b32 v{t1}, 8, v{t1}")
        k(f"v_lshl_add_u32 v{t0}, v{t1}, 4, v{t0}")
        k(f"v_lshl_add_u32 v{t0}, v{g}, 4, v{t0}")
        k(f"v_add_u32 v{V_QR}, {LDS_QK}, v{t0}")
        k(f"v_lshrrev_b32 v{t2}, 2, v{c}")
        k(f"v_lshlrev_b32 v{t2}, 1, v{t2}")
        k(f"v_and_b32 v{t1}, 1, v{c}")
        k(f"v_or_b32 v{t2}, v{t2}, v{t1}")
        k(f"v_and_b32 v{t1}, 2, v{c}")
        k(f"v_mul_u32_u24 v{t0}, 544, v{t2}")
        k(f"v_lshl_add_u32 v{t0}, v{t1}, 6, v{t0}")
        k(f"v_lshl_add_u32 v{t0}, v{g}, 4, v{t0}")
        k(f"v_add_u32 v{V_KR}, {LDS_QK + 256}, v{t0}")
        k(f"v_lshlrev_b32 v{t0}, 11, v{t1}")
        k(f"v_lshl_add_u32 v{t0}, v{g}, 9, v{t0}")
        k(f"v_lshl_add_u32 v{V_KXS}, v{t2}, 4, v{t0}")
        k(f"s_and_b32 s{S_T0}, s{S_W}, 1")
        k(f"s_lshl_b32 s{S_T0}, s{S_T0}, 6")
        k(f"v_add_u32 v{t2}, s{S_T0}, v0")
        k(f"v_and_b32 v{t0}, 7, v{t2}")
        k(f"v_mul_u32_u24 v{t0}, 544, v{t0}")
        k(f"v_lshrrev_b32 v{t1}, 3, v{t2}")
        k(f"v_lshl_add_u32 v{t0}, v{t1}, 4, v{t0}")
        k(f"v_add_u32 v{t0}, {LDS_QK + 256}, v{t0}")
        k(f"v_lshlrev_b32 v{t1}, 4, v{t2}")
        k(f"v_add_u32 v{t1}, {LDS_MEM + 5120}, v{t1}")
        k(f"s_cmp_eq_u32 s{S_A}, 0")
        k(f"s_cselect_b64 vcc, -1, 0")
        k(f"v_cndmask_b32 v{V_KVM}, v{t1}, v{t0}, vcc")
        k(f"s_lshr_b32 s{S_T0}, s{S_W}, 1")
        k(f"s_lshl_b32 s{S_T0}, s{S_T0}, 10")
        k(f"s_and_b32 s{S_T1}, s{S_W}, 1")
        k(f"s_lshl_b32 s{S_T1}, s{S_T1}, 5")
        k(f"s_add_u32 s{S_T0}, s{S_T0}, s{S_T1}")
        k(f"s_add_u32 s{S_T0}, s{S_T0}, {LDS_MEM}")
        k(f"v_and_b32 v{t0}, 6, v{c}")
        k(f"v_lshlrev_b32 v{t0}, 5, v{t0}")
        k(f"v_and_b32 v{t1}, 1, v{c}")
        k(f"v_lshl_add_u32 v{t0}, v{t1}, 4, v{t0}")
        k(f"v_lshl_add_u32 v{t0}, v{g}, 8, v{t0}")
        k(f"v_add_u32 v{V_OW}, s{S_T0}, v{t0}")
        k(f"v_lshlrev_b32 v{t0}, 11, v{g}")
        k(f"v_lshl_add_u32 v{V_PUB}, v{c}, 2, v{t0}")
        k(f"v_and_b32 v{t0}, 2, v{c}")
        k(f"v_lshlrev_b32 v{t0}, 4, v{t0}")
        k(f"v_lshl_add_u32 v{t0}, v{g}, 4, v{t0}")
        k(f"v_and_b32 v{t1}, 1, v{c}")
        k(f"v_lshl_add_u32 v{t0}, v{t1}, 3, v{t0}")
        k(f"v_and_b32 v{t1}, {0x2d if self.opt.get('x4') else 0x2c}, v0")
        k(f"v_cmp_eq_u32 vcc, 0, v{t1}")
        k(f"v_mov_b32 v{t1}, 0x40000000")
        k(f"v_cndmask_b32 v{V_RST}, v{t1}, v{t0}, vcc")
        k(f"v_and_b32 v{t0}, 1, v{g}")
        k(f"v_lshlrev_b32 v{t0}, 10, v{t0}")
        k(f"v_and_b32 v{t1}, 2, v{g}")
        k(f"v_lshl_add_u32 v{t0}, v{t1}, 8, v{t0}")
        k(f"v_lshl_add_u32 v{t0}, v{c}, 4, v{t0}")
        k(f"s_lshl_b32 s{S_T0}, s{S_W}, 11")
        k(f"s_add_u32 s{S_T0}, s{S_T0}, 8192")
        k(f"v_add_u32 v{V_VXS}, s{S_T0}, v{t0}")
        k(f"s_lshl_b32 s{S_W4096}, s{S_W}, 12")
        k(f"s_add_u32 s{S_W4096}, s{S_W4096}, {32 * 16384}")
        for t in range(4):
            m = 0x11111111 << t
            k(f"s_mov_b32 s{S_SEL + 2 * t}, {m:#x}")
            k(f"s_mov_b32 s{S_SEL + 2 * t + 1}, {m:#x}")
        k(f"v_lshlrev_b32 v{V_L16}, 4, v0")
        k(f"s_mul_i32 s{S_T0}, s{S_W}, {LDS_WAVE_W}")
        k(f"s_add_u32 s{S_T0}, s{S_T0}, {LDS_W}")
        k(f"v_add_u32 v{V_WL}, s{S_T0}, v{V_L16}")
        k(f"s_mov_b32 s{S_B0}, 0xf00ff00f")
        k(f"s_mov_b32 s{S_B0 + 1}, 0xf00ff00f")
        k(f"s_mov_b32 s{S_C}, {fbits(math.log2(math.e) / math.sqrt(128.0)):#x}")
        k(f"s_mov_b32 s{S_SENT}, {SENT:#x}")
        k(f"s_mov_b32 s{S_SENT2}, {SENT:#x}")
        k(f"s_mov_b32 s{S_SENT2 + 1}, {SENT:#x}")
        k(f"s_mov_b32 s{S_3F80}, 0x3f80")
        lim = int(self.opt.get('lim', 40))
        k(f"s_mov_b32 s{S_LIM}, {(127 - lim) << 23:#x}")
        k(f"s_mov_b32 s{S_LIM2}, {(2 * lim) << 23:#x}")
        k(f"s_lshl_b32 s{S_T2}, s{S_H}, 1")
        k(f"s_add_u32 s{S_T2}, s{S_T2}, s{S_W}")
        k(f"s_add_u32 s{S_T2}, s{S_T2}, 16")
        k(f"s_cmp_lt_u32 s{S_W}, 2")
        k(f"s_cselect_b32 s{S_RHO}, s{S_T2}, s{S_H}")
        k(f"s_cselect_b32 s{S_RED}, 1, 0")
        k(f"s_lshl_b32 s{S_T0}, s{S_W}, 5")
        k(f"s_add_u32 s{S_T0}, s{S_T0}, s{S_H}")
        k(f"s_cmp_lt_u32 s{S_T0}, 80")
        k(f"s_cselect_b32 s{S_RED}, 1, 0")
        k(f"s_cselect_b32 s{S_REDM}, 0, {OOB:#x}")
        k(f"s_mul_i32 s{S_T0}, s{S_A}, {2 * INBOX_SLOT}")
        k(f"s_add_u32 s{S_T0}, s{S_T0}, {WS_INBOX}")
        k(f"s_lshl_b32 s{S_T1}, s{S_RHO}, 11")
        k(f"s_add_u32 s{S_INB}, s{S_T0}, s{S_T1}")
        k(f"s_mov_b32 s{S_RS0}, {OOB:#x}")
        k(f"s_mov_b32 s{S_KVT}, {OOB:#x}")
        k(f"s_mov_b32 s{S_CNT}, 0")
        k(f"s_mov_b32 s{S_CL}, 0")
        k(f"s_mov_b32 s{S_CR}, 0")
        k(f"s_mov_b32 s{S_RS2}, {OOB:#x}")
        k(f"s_lshl_b32 s{S_T1}, s{S_H}, 6")
        k(f"s_add_u32 s{S_T0}, s{S_T0}, s{S_T1}")
        k(f"s_lshl_b32 s{S_T1}, s{S_W}, 13")
        k(f"s_add_u32 s{S_PUB}, s{S_T0}, s{S_T1}")
        k(f"s_lshl_b32 s{S_T0}, s{S_RHO}, 6")
        k(f"v_add_u32 v{V_RST}, s{S_T0}, v{V_RST}")
        k(f"s_lshl_b32 s{S_T0}, s{S_A}, 15")
        k(f"s_add_u32 s{S_MLB}, s{S_T0}, {WS_MEML}")
        k(f"s_lshl_b32 s{S_T0}, s{S_H}, 14")
        k(f"s_add_u32 s{S_KX}, s{S_T0}, {WS_KV}")
        k(f"s_lshl_b32 s{S_T0}, s{S_H}, 11")
        k(f"s_lshl_b32 s{S_T1}, s{S_W}, 10")
        k(f"s_add_u32 s{S_T0}, s{S_T0}, s{S_T1}")
        k(f"s_mul_i32 s{S_T1}, s{S_A}, {WS_VM - WS_KM}")
        k(f"s_add_u32 s{S_T0}, s{S_T0}, s{S_T1}")
        k(f"s_add_u32 s{S_KVM}, s{S_T0}, {WS_KM - 65536}")
        k(f"s_cmp_lt_u32 s{S_W}, 2")
        k(f"s_cselect_b32 s{S_KVM}, s{S_KVM}, {OOB:#x}")
        k(f"s_cselect_b32 s{S_KVS}, 65536, 0")
        k(f"s_cselect_b64 {sr(S_KVX, 2)}, -1, 1")
        k(f"s_lshr_b32 s{S_T0}, s{S_H}, 1")
        k(f"s_lshl_b32 s{S_T0}, s{S_T0}, 7")
        k(f"s_and_b32 s{S_T1}, s{S_H}, 1")
        k(f"s_lshl_b32 s{S_T1}, s{S_T1}, 1")
        k(f"s_add_u32 s{S_T1}, s{S_T1}, s{S_A}")
        k(f"s_lshl_b32 s{S_T1}, s{S_T1}, 4")
        k(f"s_add_u32 s{S_T0}, s{S_T0}, s{S_T1}")
        k(f"s_add_u32 s{S_T0}, s{S_T0}, {FL_CHAIN}")
        k(f"s_cmp_eq_u32 s{S_W}, 2")
        k(f"s_cselect_b32 s{S_KVM}, s{S_T0}, s{S_KVM}")
        k(f"s_cselect_b64 {sr(S_W2M, 2)}, 1, 0")
        k(f"s_lshl_b32 s{S_T0}, s{S_H}, 7")
        k(f"s_add_u32 s{S_PRG}, s{S_T0}, {FL_PROG}")
        k(f"s_mov_b32 s{S_READY}, 0")
        k(f"s_mul_i32 s{S_W1280}, s{S_W}, 1280")
        k(f"v_add_u32 v{V_MW}, s{S_W1280}, v{V_L16}")
        k(f"s_add_u32 s{S_MEMM}, s{S_W1280}, {LDS_MEM + 5120}")
        k(f"s_mov_b32 s{S_DLT}, {INBOX_SLOT}")
        k(f"s_mov_b32 s{S_MLW}, s{S_MLB}")
        k(f"s_add_u32 s{S_MLR}, s{S_MLB}, s{S_W1280}")

    def late_consts(self):
        k = self.k
        k(f"s_lshr_b32 s{S_T0}, s{S_W}, 1")
        k(f"s_lshl_b32 s{S_T0}, s{S_T0}, 12")
        k(f"s_and_b32 s{S_T1}, s{S_W}, 1")
        k(f"s_lshl_b32 s{S_T1}, s{S_T1}, 10")
        k(f"s_add_u32 s{S_T0}, s{S_T0}, s{S_T1}")
        k(f"s_add_u32 s{S_KXM}, s{S_T0}, {LDS_KX}")
        k(f"s_lshl_b32 s{S_T0}, s{S_W}, 7")
        k(f"s_add_u32 s{S_KXO}, s{S_KX}, s{S_T0}")
        k(f"s_lshl_b32 s{S_RO}, s{S_W}, 11")
        k(f"s_add_u32 s{S_RM0}, s{S_RO}, {LDS_MEM + 5120}")
        k(f"s_mov_b32 s{S_OOB}, {OOB:#x}")
        k(f"v_min_u32 v{V_SM}, {39 * 16}, v{V_L16}")
        k(f"v_lshl_add_u32 v{V_SM}, v{V_SM}, 3, 60")
        k(f"s_mov_b32 s{S_ONES2}, 0x3f803f80")
        k(f"s_mov_b32 s{S_ONES2 + 1}, 0x3f803f80")
        for t in range(5):
            k(f"s_add_u32 s{S_PB + t}, s{S_PUB}, {32768 * t}")
        if self.opt.get("t2"):
            k(f"s_lshl_b32 s{S_T0}, s{S_A}, 5")
            k(f"s_add_u32 s{S_T0}, s{S_T0}, s{S_H}")
            k(f"s_lshl_b32 s{S_T0}, s{S_T0}, 2")
            k(f"s_add_u32 s{S_T0}, s{S_T0}, s{S_W}")
            k(f"s_lshl_b32 s{S_T0}, s{S_T0}, 12")
            k(f"s_add_u32 s97, s{S_T0}, {WS_STAMP + 2 * MB - 64}")

    def remote_offsets(self, pol_sgpr):
        k = self.k
        k(f"s_lshl_b32 s{S_T0}, s{pol_sgpr}, 13")
        k(f"s_add_u32 s{S_T0}, s{S_T0}, {WS_MEMR}")
        k(f"s_lshl_b32 s{S_T1}, s{S_A}, 14")
        k(f"s_add_u32 s{S_MRW}, s{S_T0}, s{S_T1}")
        k(f"s_xor_b32 s{S_MRR}, s{S_MRW}, 0x4000")

    def probe_polarity(self, dst):
        k = self.k
        k("v_mov_b32 v40, 0")
        k("s_mov_b64 exec, 1")
        for pol in range(2):
            k(f"s_mov_b32 s{S_T2 + pol}, -1")
        for rep in range(4):
            for pol in range(2):
                k(f"s_mov_b32 s{S_T0}, {WS_MEMR + 8192 * pol + 7936}")
                k(f"s_memtime {sr(S_TA, 2)}")
                k("s_waitcnt lgkmcnt(0)")
                k(f"s_mov_b32 s{S_T1}, s{S_TA}")
                k(f"buffer_store_dword v40, v40, {WS}, s{S_T0} offen sc1")
                k("s_waitcnt vmcnt(0)")
                k(f"s_memtime {sr(S_TA, 2)}")
                k("s_waitcnt lgkmcnt(0)")
                k(f"s_sub_u32 s{S_T1}, s{S_TA}, s{S_T1}")
                k(f"s_min_u32 s{S_T2 + pol}, s{S_T2 + pol}, s{S_T1}")
        k("s_mov_b64 exec, -1")
        k(f"s_cmp_lt_u32 s{S_T3}, s{S_T2}")
        k(f"s_cselect_b32 s{dst}, 1, 0")

    def piece_store(self, lo, so, st):
        if self.opt.get("x4"):
            self.k(f"buffer_store_dwordx4 {vr(lo, 4)}, v{V_RST}, {WS}, s{so} offen{st}")
        else:
            self.k(f"buffer_store_dwordx2 {vr(lo, 2)}, v{V_RST}, {WS}, s{so} offen{st}")

    def widen(self, lo):
        if self.opt.get("x4"):
            self.k(f"v_mov_b32_dpp v{lo + 2}, v{lo} quad_perm:[1,1,3,3] row_mask:0xf bank_mask:0xf")
            self.k(f"v_mov_b32_dpp v{lo + 3}, v{lo + 1} quad_perm:[1,1,3,3] row_mask:0xf bank_mask:0xf")

    def init_sentinels(self, st):
        k = self.k
        skip = k.label("nosent")
        k(f"s_cmp_eq_u32 s{S_RED}, 0")
        k(f"s_cbranch_scc1 {skip}")
        for i in range(4):
            k(f"v_mov_b32 v{40 + i}, s{S_SENT}")
        for slot in range(2):
            k(f"s_add_u32 s{S_T0}, s{S_INB}, {slot * INBOX_SLOT}")
            for ld in range(2):
                k(f"buffer_store_dwordx4 v[40:43], v{V_L16}, {WS}, s{S_T0} offen offset:{1024 * ld}{st}")
        for slot in range(4):
            k(f"s_add_u32 s{S_T0}, s{S_MLB}, {slot * 8192}")
            self.piece_store(40, S_T0, st)
        k(f"v_lshlrev_b32 v44, 11, v{V_L16}")
        k(f"s_lshl_b32 s{S_T0}, s{S_A}, 14")
        k(f"s_add_u32 s{S_T0}, s{S_T0}, {WS_MEMR}")
        k(f"s_lshl_b32 s{S_T1}, s{S_RHO}, 6")
        k(f"s_add_u32 s{S_T0}, s{S_T0}, s{S_T1}")
        for pol in range(2):
            for q in range(4):
                k(f"buffer_store_dwordx4 v[40:43], v44, {WS}, s{S_T0} offen offset:{16 * q} sc1")
            k(f"s_add_u32 s{S_T0}, s{S_T0}, 8192")
        k(f"{skip}:")

    def pre_step(self, kvm=True):
        k = self.k
        self.lds_unit(U[0], ("v0", 0))
        self.lds_unit(U[1], ("v1", 0))
        for r in range(16, 40, 2):
            k(f"v_mov_b64 {vr(r, 2)}, 0")

    def delay(self, n):
        while n > 0:
            m = min(n // 4, 16)
            if m <= 0:
                break
            self.k(f"s_nop {m - 1}")
            n -= 4 * m

    def seldom(self, back, regs):
        k = self.k
        go = k.label("go")
        self.spin()
        k(f"s_and_b32 s{S_T0}, s{S_SPIN}, 7")
        k(f"s_cbranch_scc1 {go}")
        self.exact_check(regs)
        k(f"s_cbranch_scc0 {back}")
        k(f"{go}:")

    def loop(self, tag, st):
        k = self.k
        smf = self.smf
        opt = self.opt
        top = f"L_step_{tag}"
        outl = []
        cmpu = "f" if opt.get("free") else "u"

        def check_branch(c):
            b = k.label("bk")
            if not opt.get("nobr"):
                k(f"s_cbranch_vccnz L_rt{c}_{tag}")
            k(f"{b}:")
            outl.append((c, b))

        def M(m, c):
            u = (m, c)
            smf(ACC[m], F[c % 3], U[int(m[1])] if u in LDS_OF else REG_OF[u])

        natt = opt.get("natt", 2)
        SR = [82, 68, 70][:natt]
        t2 = 1 if opt.get("t2") else 0

        def masked(mask, line):
            return [f"s_mov_b64 exec, {mask}", line, "s_mov_b64 exec, -1"]

        k(f"{top}:")
        k("s_barrier")
        self.stamp("top")
        k(f"s_cbranch_scc1 L_t012_{tag}")
        self.delay(opt.get("d2", 0))
        for r in SR:
            self.sample(False, r)
            self.mem_dma(False)
        self.stamp("iss")
        k(f"s_waitcnt vmcnt({6 * natt - 1})")
        self.stamp("smp")
        self.cmp_nan(82)
        k(f"s_cbranch_vccnz L_rl_{tag}")
        k(f"L_bl_{tag}:")
        self.sample(True, 80)
        k("s_barrier")
        k(f"s_waitcnt vmcnt({6 * natt - 5})")
        k(f"L_tb_{tag}:")
        self.stamp("dma")
        k("s_barrier")
        self.frag(F[0], 0)
        self.frag(F[1], 1)
        k(f"L_go_{tag}:")
        k(f"s_mov_b32 m0, s{S_KXM}")
        k(f"s_add_u32 s{S_T2}, s{S_KX}, s{S_W4096}")
        k(f"s_add_u32 s{S_T3}, s{S_STEP}, 1")
        k("s_waitcnt lgkmcnt(1)")
        self.stamp("c0")
        vxl = lambda n: k(f"buffer_load_dwordx4 {vr(VX + 4 * n, 4)}, v{V_VXS}, {WS}, s{S_KX} offen offset:{256 * n} sc1")
        for c in range(5):
            nxt0 = ("v0", c + 1) in LDS_OF
            nxt1 = ("v1", c + 1) in LDS_OF
            M("v0", c)
            if nxt0:
                self.upart(U[0], ("v0", c + 1), 0)
            if c == 4:
                k(f"s_cbranch_vccnz L_rr_{tag}")
                k(f"L_br_{tag}:")
                k("s_barrier")
                self.frag(F[2], 5)
            M("q0", c)
            if nxt0:
                self.upart(U[0], ("v0", c + 1), 1)
            if c == 0:
                k(f"v_lshlrev_b32 v14, 3, v{V_L16}")
            if c == 4:
                self.frag(F[0], 6)
                k(f"s_cmp_ge_u32 s{S_T3}, s{S_READY}")
            M("q1", c)
            if c < 3:
                self.frag(F[(c + 2) % 3], c + 2)
                k("s_waitcnt lgkmcnt(3)")
            elif c == 3:
                k("s_waitcnt lgkmcnt(2)")
            else:
                k(f"s_cbranch_scc1 L_rdy_{tag}")
                k(f"L_brdy_{tag}:")
            M("v1", c)
            if nxt1:
                self.upart(U[1], ("v1", c + 1), 0)
            elif c == 3:
                vxl(1)
            else:
                k(f"s_mov_b32 m0, {LDS_JUNK}")
            M("k0", c)
            if nxt1:
                self.upart(U[1], ("v1", c + 1), 1)
            elif c == 3:
                k("s_waitcnt lgkmcnt(0)")
            else:
                k("s_mov_b32 exec_hi, 0")
                k(f"buffer_load_dword v14, {WS}, s{S_T2} offen sc1 lds")
                k("s_mov_b32 exec_hi, -1")
            M("k1", c)
            if c < 3:
                k("s_waitcnt lgkmcnt(3)")
                if c < 2:
                    k(f"buffer_load_dwordx4 v{V_KXS}, {WS}, s{S_KXO} offen offset:{2048 * c} sc1 lds")
                else:
                    vxl(0)
            elif c == 3:
                self.stamp("L3")
                k(f"s_waitcnt vmcnt(4)")
                self.stamp("rem")
                self.cmp_nan(80)
            else:
                k("s_waitcnt lgkmcnt(1)")
        self.stamp("L")
        def svc(lines):
            skip = k.label("svc")
            k(f"s_cbranch_scc1 {skip}")
            for x in lines: k(x)
            k(f"{skip}:")

        rs = lambda off: [f"buffer_store_dwordx4 v[84:87], v{V_L16}, {WS}, s{S_RS0} offen offset:{off}{st}"]
        for c in range(5, 10):
            M("q0", c)
            if c < 8:
                self.frag(F[(c + 2) % 3], c + 2)
            elif c == 8:
                self.frag(F[1], 5)
            else:
                self.frag(F[2], 6)
                k("s_nop 0")
            if c == 6:
                k("s_waitcnt vmcnt(3)")
            if c == 8:
                k("s_waitcnt vmcnt(1)")
            M("q1", c)
            if c == 6:
                k("s_barrier")
            elif c == 7:
                self.kxpart(U[1], 1, 1)
                k(f"s_cmp_eq_u32 s{S_W}, 3")
            elif c == 8:
                if not opt.get("nokvm"):
                    svc(masked(sr(S_KVX, 2), f"buffer_store_dwordx4 v[76:79], v{V_L16}, {WS}, s{S_KVT} offen sc1"))
                k(f"s_cmp_eq_u32 s{S_RED}, 0")
            elif c == 9:
                if opt.get("nors"):
                    k("s_nop 2")
                else:
                    svc(rs(0))
            M("k0", c)
            if c == 9:
                k("s_nop 1")
                k("v_add_f32 v16, v16, v18")
            M("k1", c)
            if 6 <= c < 9:
                self.kxpart(U[(c - 6) >> 1], (c - 6) >> 1, (c - 6) & 1)
            if c < 9:
                k(f"s_waitcnt lgkmcnt({[1, 2, 4, 4][c - 5]})")
        self.stamp("R")
        VF = [F[1], F[2], F[0], F[1], F[2]]

        def V(i):
            m, c = ("v0", "v1")[i & 1], i >> 1
            smf(ACC[m], VF[c], REG_OF[(m, 5 + c)])

        self.frag(F[0], 7)
        k("v_add_f32 v17, v17, v19")
        k("v_add_f32 v20, v20, v22")
        k("v_add_f32 v21, v21, v23")
        k("v_cvt_pk_bf16_f32 v82, v16, v20")
        k("v_cvt_pk_bf16_f32 v83, v17, v21")
        k("s_waitcnt lgkmcnt(1)")
        V(0)
        k(f"ds_write2_b32 v{V_QW}, v82, v83 offset0:0 offset1:136")
        k(f"v_cmp_{'tru' if opt.get('forcebad') else cmpu}_f32 vcc, v16, v17")
        V(1)
        self.frag(F[1], 8)
        k("v_add_f32 v24, v24, v26")
        V(2)
        k(f"s_cbranch_vccnz L_bad_{tag}")
        k(f"L_bbad_{tag}:")
        V(3)
        if not opt.get("nors"):
            svc(rs(1024))
        self.frag(F[2], 9)
        k("s_waitcnt lgkmcnt(2)")
        V(4)
        k("s_barrier")
        k(f"ds_read_b128 v[76:79], v{V_QR}")
        k("v_add_f32 v25, v25, v27")
        V(5)
        k(f"ds_read_b128 v[80:83], v{V_QR} offset:64")
        k("s_waitcnt lgkmcnt(3)")
        V(6)
        self.kxpart(16, 2, 0)
        k("v_add_f32 v28, v28, v30")
        V(7)
        if not opt.get("noring"):
            svc([f"buffer_store_dwordx4 v[84:87], v{V_RST}, {WS}, s{S_RS2} offen{st}"])
        k("s_waitcnt lgkmcnt(3)")
        k("v_add_f32 v29, v29, v31")
        V(8)
        self.kxpart(16, 2, 1)
        k(f"v_mul_f32 v24, s{S_C}, v24")
        V(9)
        k("s_waitcnt lgkmcnt(2)")
        k(f"v_mul_f32 v28, s{S_C}, v28")
        self.stamp("V")
        KT = [U[0], U[1], 16, 24, F[0]]

        def xs(t, m):
            c = "0" if m == 0 else vr(KT[t], 4)
            k(f"v_mfma_f32_16x16x32_bf16 {vr(KT[t], 4)}, {vr(KT[t] + 4 * m, 4)}, {vr(76 + 4 * m, 4)}, {c}")

        def sa(t, hi):
            d = KT[t]
            if hi == 0:
                k(f"v_add_f32_dpp v{84 + t}, v{d + 2}, v{d} row_ror:8 row_mask:0xf bank_mask:0x9")
            else:
                k(f"v_add_f32_dpp v{84 + t}, v{d + 1}, v{d + 3} row_ror:8 row_mask:0xf bank_mask:0x6")

        def se(t):
            k(f"v_exp_f32 v{84 + t}, v{84 + t}")

        def pv():
            return [
                "v_mfma_f32_16x16x32_bf16 v[44:47], v[48:51], v[60:63], 0",
                f"v_mfma_f32_16x16x32_bf16 v[32:35], {vr(VX, 4)}, v[60:63], 0",
                f"v_mfma_f32_16x16x32_bf16 v[36:39], {vr(VX + 4, 4)}, v[60:63], 0",
                "v_mfma_f32_16x16x16_bf16 v[44:47], v[48:49], v[80:81], v[44:47]",
                "v_mfma_f32_16x16x16_bf16 v[32:35], v[64:65], v[80:81], v[32:35]",
                "v_mfma_f32_16x16x16_bf16 v[36:39], v[66:67], v[80:81], v[36:39]",
            ]

        WU = [(52, ("o", 0, 0)), (16, ("o", 0, 1)), (24, ("o", 1, 0))]

        def wu(i):
            self.upart(WU[i >> 1][0], WU[i >> 1][1], i & 1)

        P = pv()
        xs(0, 0)
        k(f"v_mul_f32 v25, s{S_C}, v25")
        k(f"v_mul_f32 v29, s{S_C}, v29")
        xs(0, 1)
        k("v_cvt_pk_bf16_f32 v14, v24, v28")
        k("v_cvt_pk_bf16_f32 v15, v25, v29")
        xs(1, 0)
        k(f"ds_write2_b32 v{V_QW}, v14, v15 offset0:64 offset1:200")
        xs(1, 1)
        self.kxpart(24, 3, 0)
        k("s_waitcnt lgkmcnt(2)")
        xs(2, 0)
        self.kxpart(24, 3, 1)
        sa(0, 0)
        xs(2, 1)
        k(f"v_mov_b64 v[48:49], {sr(S_ONES2, 2)}")
        sa(0, 1)
        k(f"v_mov_b64 v[50:51], {sr(S_ONES2, 2)}")
        sa(1, 0)
        k("s_waitcnt lgkmcnt(2)")
        k("s_barrier")
        k(f"ds_read_b128 {vr(F[0], 4)}, v{V_KR}")
        k(f"ds_read_b128 {vr(F[1], 4)}, v{V_KR} offset:64")
        k("s_waitcnt lgkmcnt(2)")
        self.stamp("S2")
        xs(3, 0)
        sa(1, 1)
        sa(2, 0)
        xs(3, 1)
        se(0)
        sa(2, 1)
        se(1)
        k("v_add_f32 v64, v32, v34")
        se(2)
        k("v_add_f32 v65, v33, v35")
        k("v_cvt_pk_bf16_f32 v60, v84, v85")
        k("s_waitcnt lgkmcnt(0)")
        xs(4, 0)
        sa(3, 0)
        k("v_add_f32 v66, v36, v38")
        xs(4, 1)
        self.stamp("S")
        sa(3, 1)
        k("v_add_f32 v67, v37, v39")
        se(3)
        k(f"v_mov_b32_dpp v62, v60 {ROR8}")
        k("v_cvt_pk_bf16_f32 v61, v86, v87")
        k("v_cvt_pk_bf16_f32 v64, v64, v65")
        k("v_cvt_pk_bf16_f32 v66, v66, v67")
        k(f"v_mov_b32_dpp v63, v61 {ROR8}")
        k(f"v_add_f32_dpp v14, v42, v40 {ROR8}")
        k(f"v_add_f32_dpp v15, v43, v41 {ROR8}")
        k(P[0])
        k("v_exp_f32 v14, v14")
        k(P[1])
        k("v_exp_f32 v15, v15")
        k(P[2])
        k("v_mov_b32 v81, 0")
        k("v_cvt_pk_bf16_f32 v80, v14, v15")
        k("v_mov_b32 v65, 0")
        k("v_mov_b32 v67, 0")
        k(P[3])
        wu(0)
        wu(1)
        k(P[4])
        wu(2)
        wu(3)
        k(P[5])
        wu(4)
        wu(5)
        self.stamp("PV")
        k("v_rcp_f32 v45, v44")
        k(f"v_subrev_u32 v44, s{S_LIM}, v44")
        k(f"v_cmp_{'f' if opt.get('free') else 'le'}_u32 vcc, s{S_LIM2}, v44")
        for i in range(4):
            k(f"v_mul_f32 v{32 + i}, v{32 + i}, v45")
        k("v_cvt_pk_bf16_f32 v84, v32, v33")
        k("v_cvt_pk_bf16_f32 v85, v34, v35")
        for i in range(4, 8):
            k(f"v_mul_f32 v{32 + i}, v{32 + i}, v45")
        k("v_cvt_pk_bf16_f32 v86, v36, v37")
        k("v_cvt_pk_bf16_f32 v87, v38, v39")
        self.stamp("ow")
        k(f"s_mov_b64 exec, {sr(S_B0, 2)}")
        k(f"ds_write_b128 v{V_OW}, v[84:87]")
        k(f"s_mov_b64 exec, -1")
        k(f"s_cbranch_vccnz L_max_{tag}")
        k(f"L_bmax2_{tag}:")
        OA = [40, 44, 48, 76, 80]
        k("v_mov_b32 v14, v64")
        k("v_mov_b32 v15, v66")
        nz = opt.get("nz", 6)
        zq = [f"v_mov_b64 {vr(r + 2 * i, 2)}, 0" for r in (40, 48, 44, 76, 80) for i in range(2)]
        for _ in range(nz):
            k(zq.pop(0))
        k(f"s_cmp_eq_u32 s{S_STEP}, {self.nsteps - 1}")
        k(f"s_waitcnt lgkmcnt(0)")
        self.stamp("owd")
        k("s_barrier")
        self.frag(32, 0)
        self.frag(36, 1)
        while len(zq) > 3:
            k(zq.pop(0))
        k(f"s_cbranch_scc1 L_done_{tag}")
        self.lds_unit(60, ("o", 1, 1))
        self.lds_unit(68, ("o", 3, 0))
        self.stamp("ox")

        def z():
            if zq:
                k(zq.pop(0))

        def oa(t, j):
            k(f"v_add_f32 v{OA[t] + j}, v{OA[t] + j}, v{OA[t] + 2 + j}")

        def oc(t):
            k(f"v_cvt_pk_bf16_f32 v{OA[t]}, v{OA[t]}, v{OA[t] + 1}")

        def os_(t):
            k(f"buffer_store_dword v{OA[t]}, v{V_PUB}, {WS}, s{S_PB + t} offen{st}")

        k("s_waitcnt lgkmcnt(5)")
        smf(OA[0], 32, 52)
        k("s_waitcnt lgkmcnt(4)")
        z()
        smf(OA[0], 36, 16)
        self.upart(52, ("o", 3, 1), 0)
        z()
        smf(OA[2], 32, REG_OF[("o", 2, 0)])
        self.upart(52, ("o", 3, 1), 1)
        z()
        smf(OA[2], 36, REG_OF[("o", 2, 1)])
        self.upart(16, ("o", 4, 0), 0)
        k("s_waitcnt lgkmcnt(5)")
        smf(OA[1], 32, 24)
        self.upart(16, ("o", 4, 0), 1)
        oa(0, 0)
        oa(0, 1)
        smf(OA[1], 36, 60)
        self.upart(24, ("o", 4, 1), 0)
        oc(0)
        k("s_waitcnt lgkmcnt(3)")
        smf(OA[3], 32, 68)
        self.upart(24, ("o", 4, 1), 1)
        os_(0)
        oa(2, 0)
        oa(2, 1)
        smf(OA[3], 36, 52)
        k("s_waitcnt lgkmcnt(2)")
        oc(2)
        oa(1, 0)
        smf(OA[4], 32, 16)
        os_(2)
        k("s_waitcnt lgkmcnt(0)")
        oa(1, 1)
        smf(OA[4], 36, 24)
        k(f"s_cmp_eq_u32 s{S_RED}, 0")
        oc(1)
        oa(3, 0)
        oa(3, 1)
        oc(3)
        k("s_nop 0")
        os_(1)
        os_(3)
        oa(4, 0)
        oa(4, 1)
        oc(4)
        os_(4)
        self.stamp("O")
        nored = k.label("nored")

        SET = [(40, 44), (68, 72), (76, 84)][:opt.get("nset", 3)]
        ns = len(SET)

        def gather(n):
            k(f"buffer_load_dwordx4 {vr(SET[n][0], 4)}, v{V_L16}, {WS}, s{S_INB} offen sc1")
            k(f"buffer_load_dwordx4 {vr(SET[n][1], 4)}, v{V_L16}, {WS}, s{S_INB} offen offset:1024 sc1")

        def book():
            k(f"ds_write2_b32 v{V_VW}, v14, v15 offset0:0 offset1:64")
            k(f"s_add_u32 s{S_STEP}, s{S_STEP}, 1")
            k(f"s_or_b32 s{S_RS2}, s{S_MLW}, s{S_REDM}")
            k(f"s_mov_b32 s{S_RS0}, s{S_INB}")
            k(f"s_and_b32 s{S_T1}, s{S_STEP}, 3")
            k(f"s_lshl_b32 s{S_T1}, s{S_T1}, 13")
            k(f"s_add_u32 s{S_MLW}, s{S_MLB}, s{S_T1}")
            k(f"s_add_u32 s{S_MRW}, s{S_MRW}, 32768")
            k(f"s_add_u32 s{S_MRR}, s{S_MRR}, 32768")
            k(f"s_add_u32 s{S_KVM}, s{S_KVM}, s{S_KVS}")
            k(f"s_mov_b32 s{S_KVT}, s{S_KVM}")
            k(f"s_add_u32 s{S_KX}, s{S_KX}, {32 * 16384}")
            k(f"s_add_u32 s{S_KXO}, s{S_KXO}, {32 * 16384}")
            for t in range(5):
                k(f"s_add_u32 s{S_PB + t}, s{S_PB + t}, s{S_DLT}")
            k(f"v_lshrrev_b32 v15, 2, v{V_L16}")

        def attempt(n, fail):
            a, b = SET[n]
            k(f"s_waitcnt vmcnt({2 * ns - 1})")
            k(f"v_mfma_f32_16x16x32_bf16 v[80:83], v[48:51], {vr(a, 4)}, 0")
            k(f"v_fma_f32 v14, v{a}, v{a + 1}, v{a + 2}")
            k(f"s_waitcnt vmcnt({2 * ns - 2})")
            k(f"v_mfma_f32_16x16x32_bf16 v[80:83], v[48:51], {vr(b, 4)}, v[80:83]")
            k(f"v_fma_f32 v14, v{a + 3}, v{b}, v14")
            k(f"v_fma_f32 v14, v{b + 1}, v{b + 2}, v14")
            k(f"v_cmp_{cmpu}_f32 vcc, v14, v{b + 3}")
            k("s_nop 3")
            k(f"s_cbranch_vccnz {fail}")

        k(f"s_cbranch_scc1 L_nr_{tag}")
        book()
        self.delay(opt.get("d1", 0))
        gather(0)
        self.stamp("g0")
        k(f"v_and_b32 v14, 64, v{V_L16}")
        k(f"v_lshrrev_b32 v14, 2, v14")
        k(f"v_lshlrev_b32 v14, v14, s{S_3F80}")
        for t in range(4):
            k(f"v_cndmask_b32 v{48 + t}, 0, v14, {sr(S_SEL + 2 * t, 2)}")
        for r in range(16, 40, 2):
            k(f"v_mov_b64 {vr(r, 2)}, 0")
        self.delay(opt.get("d1b", 0))
        gather(1)
        self.stamp("g1")
        self.lds_unit(U[0], ("v0", 0))
        self.lds_unit(U[1], ("v1", 0))
        if ns > 2:
            self.delay(opt.get("d1c", 56))
            gather(2)
        self.stamp("gi")
        k(f"L_red0_{tag}:")
        attempt(0, f"L_rred0_{tag}")
        k(f"L_bred_{tag}:")
        self.stamp("got")
        for i in range(4):
            k(f"v_add_f32_dpp v{80 + i}, v{80 + i}, v{80 + i} row_ror:4 row_mask:0xf bank_mask:0xf")
        for i in range(4):
            k(f"v_add_f32_dpp v{80 + i}, v{80 + i}, v{80 + i} {ROR8}")
        k("v_cvt_pk_bf16_f32 v80, v80, v81")
        k("v_cvt_pk_bf16_f32 v81, v82, v83")
        self.widen(80)
        self.piece_store(80, S_MLW, st)
        self.piece_store(80, S_MRW, " sc1")
        self.stamp("red")
        k(f"{nored}:")
        k(f"s_add_u32 s{S_INB}, s{S_INB}, s{S_DLT}")
        k(f"s_sub_u32 s{S_DLT}, 0, s{S_DLT}")
        self.stamp("end")
        if self.stamps:
            self.dump_stamps(tag)
        k("s_waitcnt lgkmcnt(0)")
        if opt.get("t2"):
            for i in range(len(opt["t2"])):
                k(f"v_writelane_b32 v49, s{T2REG[i]}, {i}")
            k(f"v_writelane_b32 v49, s{S_CNT}, 7")
            k(f"v_writelane_b32 v49, s{S_CL}, 8")
            k(f"s_add_u32 s97, s97, 64")
            k("s_mov_b64 exec, 0xffff")
            k(f"buffer_store_dword v49, v15, {WS}, s97 offen")
            k("s_mov_b64 exec, -1")
        k(f"s_cmp_lg_u32 s{S_W}, 3")
        k(f"s_branch {top}")

        k(f"L_nr_{tag}:")
        book()
        self.pre_step()
        k(f"s_branch {nored}")
        k(f"L_t012_{tag}:")
        k(f"s_waitcnt vmcnt({2 + t2})")
        k(f"ds_read_b128 v[76:79], v{V_KVM}")
        k(f"v_mov_b64 v[84:85], {sr(S_SENT2, 2)}")
        k(f"v_mov_b64 v[86:87], {sr(S_SENT2, 2)}")
        k(f"s_sub_u32 s{S_T0}, s{S_STEP}, 1")
        k(f"v_mov_b32 v48, s{S_T0}")
        k(f"s_add_u32 s{S_T0}, s{S_MRR}, s{S_RO}")
        k(f"s_mov_b32 m0, s{S_RM0}")
        k(f"s_cmp_eq_u32 s{S_W}, 2")
        k("s_waitcnt lgkmcnt(0)")
        k(f"v_cndmask_b32 v76, v76, v48, {sr(S_W2M, 2)}")
        k("s_barrier")
        k(f"buffer_load_dwordx4 v{V_L16}, {WS}, s{S_T0} offen sc1 lds")
        k(f"s_cbranch_scc1 L_tb_{tag}")
        k(f"buffer_load_dwordx4 v{V_L16}, {WS}, s{S_T0} offen offset:1024 sc1 lds")
        k(f"s_branch L_tb_{tag}")
        for n in range(ns):
            k(f"L_rred{n}_{tag}:")
            k(f"s_add_u32 s{S_CNT}, s{S_CNT}, 1")
            if n == ns - 1:
                self.seldom(f"L_bred_{tag}", [SET[n][0] + i for i in range(4)] + [SET[n][1] + i for i in range(4)])
            gather(n)
            if n == ns - 1:
                k(f"s_branch L_red0_{tag}")
            else:
                attempt(n + 1, f"L_rred{n + 1}_{tag}")
                k(f"s_branch L_bred_{tag}")

        k(f"L_rl_{tag}:")
        for n in range(natt):
            new, old = SR[n], SR[(n + 1) % natt]
            k(f"s_add_u32 s{S_CL}, s{S_CL}, 1")
            if natt > 1:
                k(f"s_waitcnt vmcnt({6 * natt - 7})")
                k(f"v_cmp_u_f32 vcc, v{old}, v{old + 1}")
                k(f"s_cbranch_vccz L_bl2_{tag}")
            self.sample(False, new)
            self.mem_dma(False)
            if natt == 1:
                k(f"s_waitcnt vmcnt(5)")
                k(f"v_cmp_u_f32 vcc, v{old}, v{old + 1}")
                k(f"s_cbranch_vccz L_bl_{tag}")
        self.exact_check([82, 83])
        k(f"s_cbranch_scc0 L_bl2_{tag}")
        self.spin()
        k(f"s_branch L_rl_{tag}")
        k(f"L_bl2_{tag}:")
        self.sample(True, 80)
        k("s_barrier")
        k(f"s_waitcnt vmcnt({max(6 * natt - 11, 1)})")
        k(f"s_branch L_tb_{tag}")

        k(f"L_rr_{tag}:")
        self.exact_check([80, 81])
        k(f"s_cbranch_scc0 L_br_{tag}")
        k(f"s_add_u32 s{S_CR}, s{S_CR}, 1")
        self.spin()
        self.sample(True, 80)
        self.mem_dma(True)
        k("s_waitcnt vmcnt(0)")
        k(f"s_branch L_rr_{tag}")
        k(f"L_bad_{tag}:")
        k(f"s_mov_b64 {sr(S_TA, 2)}, 0")
        for c in range(10):
            self.frag(76, c)
            k("s_waitcnt lgkmcnt(0)")
            for r in range(76, 80):
                k(f"v_cmp_eq_u32 vcc, s{S_SENT}, v{r}")
                k(f"s_or_b64 {sr(S_TA, 2)}, {sr(S_TA, 2)}, vcc")
        clean = k.label("clean")
        k(f"s_cbranch_scc0 {clean}")
        self.spin()
        k("s_barrier")
        self.mem_dma(False)
        self.mem_dma(True)
        k("s_waitcnt vmcnt(0)")
        k("s_barrier")
        k(f"s_branch L_bad_{tag}")
        k(f"{clean}:")
        for r in range(16, 40, 2):
            k(f"v_mov_b64 {vr(r, 2)}, 0")
        for c in range(10):
            self.frag(76, c)
            for m in ("v0", "v1"):
                if (m, c) in LDS_OF:
                    self.lds_unit(U[int(m[1])], (m, c))
            k("s_waitcnt lgkmcnt(0)")
            for m in MATS:
                if m[0] != "v" or c < 6 or (m, c) == ("v0", 6):
                    smf(ACC[m], 76, U[int(m[1])] if (m, c) in LDS_OF else REG_OF[(m, c)])
        for t in range(2):
            self.kxpart(U[t], t, 0)
            self.kxpart(U[t], t, 1)
        self.frag(F[2], 6)
        self.frag(F[0], 7)
        self.frag(F[1], 8)
        for r in (16, 17, 20, 21, 24):
            k(f"v_add_f32 v{r}, v{r}, v{r + 2}")
        k("v_cvt_pk_bf16_f32 v82, v16, v20")
        k("v_cvt_pk_bf16_f32 v83, v17, v21")
        k(f"ds_write2_b32 v{V_QW}, v82, v83 offset0:0 offset1:136")
        k("s_waitcnt lgkmcnt(0)")
        k(f"s_cmp_eq_u32 s{S_RED}, 0")
        k(f"s_branch L_bbad_{tag}")
        k(f"L_max_{tag}:")
        k("s_waitcnt lgkmcnt(0)")
        k("v_mov_b32 v32, v64")
        k("v_mov_b32 v33, v66")
        k(f"ds_read_b128 v[76:79], v{V_QR}")
        k(f"ds_read_b128 v[80:83], v{V_QR} offset:64")
        k(f"ds_read_b128 {vr(F[0], 4)}, v{V_KR}")
        k(f"ds_read_b128 {vr(F[1], 4)}, v{V_KR} offset:64")
        for t in range(4):
            self.kxpart(KT[t], t, 0)
            self.kxpart(KT[t], t, 1)
        k("s_waitcnt lgkmcnt(0)")
        for t in range(5):
            xs(t, 0)
            xs(t, 1)
        for t in range(4):
            sa(t, 0)
            sa(t, 1)
        k(f"v_add_f32_dpp v14, v42, v40 {ROR8}")
        k(f"v_add_f32_dpp v15, v43, v41 {ROR8}")
        for i in range(6):
            wu(i)
        k("v_max3_f32 v82, v84, v85, v86")
        k("v_max_f32 v82, v82, v87")
        k(f"s_mov_b64 exec, {sr(S_B0, 2)}")
        k("v_max3_f32 v82, v82, v14, v15")
        k("s_mov_b64 exec, -1")
        k(f"v_max_f32_dpp v82, v82, v82 {ROR8}")
        k("v_mov_b32 v83, v82")
        k("v_permlane16_swap_b32 v82, v83")
        k("v_max_f32 v82, v82, v83")
        k("v_mov_b32 v83, v82")
        k("v_permlane32_swap_b32 v82, v83")
        k("v_max_f32 v82, v82, v83")
        for r in [84, 85, 86, 87, 14, 15]:
            k(f"v_sub_f32 v{r}, v{r}, v82")
            k(f"v_exp_f32 v{r}, v{r}")
        k("v_cvt_pk_bf16_f32 v60, v84, v85")
        k("v_cvt_pk_bf16_f32 v61, v86, v87")
        k("v_cvt_pk_bf16_f32 v80, v14, v15")
        k("v_mov_b32 v81, 0")
        k(f"v_mov_b32_dpp v62, v60 {ROR8}")
        k(f"v_mov_b32_dpp v63, v61 {ROR8}")
        k("v_mov_b32 v64, v32")
        k("v_mov_b32 v65, 0")
        k("v_mov_b32 v66, v33")
        k("v_mov_b32 v67, 0")
        for x in pv():
            k(x)
        k("v_rcp_f32 v45, v44")
        for i in range(8):
            k(f"v_mul_f32 v{32 + i}, v{32 + i}, v45")
        for i in range(4):
            k(f"v_cvt_pk_bf16_f32 v{84 + i}, v{32 + 2 * i}, v{33 + 2 * i}")
        k(f"s_mov_b64 exec, {sr(S_B0, 2)}")
        k(f"ds_write_b128 v{V_OW}, v[84:87]")
        k(f"s_mov_b64 exec, -1")
        k(f"s_branch L_bmax2_{tag}")
        k(f"L_rdy_{tag}:")
        self.ready_poll(82, 83)
        k(f"s_branch L_brdy_{tag}")
        k(f"L_done_{tag}:")
        k(f"ds_write2_b32 v{V_VW}, v14, v15 offset0:0 offset1:64")
        k(f"s_add_u32 s{S_KVM}, s{S_KVM}, s{S_KVS}")
        k("s_waitcnt vmcnt(0) lgkmcnt(0)")
        k("s_barrier")
        k(f"ds_read_b128 v[76:79], v{V_KVM}")
        k(f"v_mov_b32 v48, {self.nsteps - 1}")
        k("s_waitcnt lgkmcnt(0)")
        k(f"v_cndmask_b32 v76, v76, v48, {sr(S_W2M, 2)}")
        k(f"s_mov_b64 exec, {sr(S_KVX, 2)}")
        k(f"buffer_store_dwordx4 v[76:79], v{V_L16}, {WS}, s{S_KVM} offen sc1")
        k("s_mov_b64 exec, -1")
        k(f"v_mov_b32 v48, {self.nsteps}")
        k(f"s_cmp_eq_u32 s{S_W}, 2")
        k(f"s_cselect_b32 s{S_T0}, s{S_KVM}, {OOB:#x}")
        k("s_waitcnt vmcnt(0)")
        k("s_barrier")
        k("s_mov_b64 exec, 1")
        k(f"buffer_store_dword v48, v{V_L16}, {WS}, s{S_T0} offen sc1")
        k("s_mov_b64 exec, -1")

    def ready_poll(self, t0, t1):
        k = self.k
        if self.opt.get("noready"):
            k(f"s_mov_b32 s{S_READY}, 128")
            return
        lp = k.label("rdy")
        k(f"{lp}:")
        self.spin()
        k(f"v_lshrrev_b32 v{t0}, 2, v{V_L16}")
        k(f"v_and_b32 v{t0}, 12, v{t0}")
        k(f"buffer_load_dword v{t1}, v{t0}, {WS}, s{S_PRG} offen sc1")
        k(f"v_lshrrev_b32 v{t0}, 2, v{t0}")
        k("s_waitcnt vmcnt(0)")
        k(f"v_lshl_add_u32 v{t1}, v{t1}, 2, v{t0}")
        k(f"v_readlane_b32 s{S_READY}, v{t1}, 0")
        for i in range(1, 4):
            k(f"v_readlane_b32 s{S_T0}, v{t1}, {i}")
            k(f"s_min_u32 s{S_READY}, s{S_READY}, s{S_T0}")
        k(f"s_cmp_ge_u32 s{S_READY}, 64")
        k(f"s_cselect_b32 s{S_READY}, 128, s{S_READY}")
        k(f"s_cmp_ge_u32 s{S_T3}, s{S_READY}")
        k(f"s_cbranch_scc1 {lp}")

    def load_weights(self, SQ, SK, SV, SO, claim):
        k = self.k
        VS, VS2, t0, t1, lane, f = [64, 65], [66, 67], 84, 85, 86, 87
        VT, VT2 = [[68, 69], [70, 71]], [72, 73, 74, 75]
        S_LB, S_RB, S_OB, S_RG = 67, 77, S_TA, S_TA + 1
        k(f"v_mov_b32 v{lane}, v0")
        k(f"v_lshrrev_b32 v{t0}, 5, v{lane}")
        k(f"v_bfe_u32 v{t1}, v{lane}, 4, 1")
        k(f"v_lshl_add_u32 v{t0}, v{t0}, 3, v{t1}")
        k(f"v_lshlrev_b32 v{t0}, 13, v{t0}")
        k(f"v_lshrrev_b32 v{t1}, 3, v{lane}")
        k(f"v_and_b32 v{t1}, 6, v{t1}")
        k(f"v_xor_b32 v{t1}, v{t1}, v{lane}")
        k(f"v_and_b32 v{t1}, 15, v{t1}")
        k(f"v_lshl_add_u32 v{VS[0]}, v{t1}, 4, v{t0}")
        k(f"v_xor_b32 v{VS[1]}, 128, v{VS[0]}")
        k(f"s_mul_i32 s{S_RG}, s{S_W}, {LDS_WAVE_W}")
        k(f"s_add_u32 s{S_RG}, s{S_RG}, {LDS_W}")
        k(f"s_lshl_b32 s{S_T0}, s{S_H}, 8")
        k(f"s_lshl_b32 s{S_T1}, s{S_W}, 17")
        k(f"s_add_u32 s{S_T0}, s{S_T0}, s{S_T1}")
        k(f"s_mul_i32 s{S_T1}, s{S_A}, {320 * 8192}")
        k(f"s_add_u32 s{S_LB}, s{S_T0}, s{S_T1}")
        k(f"s_sub_u32 s{S_T1}, {320 * 8192}, s{S_T1}")
        k(f"s_add_u32 s{S_RB}, s{S_T0}, s{S_T1}")
        items = [(m, c) for c in range(10) for m in "qk"] + [("v", c) for c in range(4, 10)] + [("o", 2)]
        items += [("v", c) for c in range(4)] + [("o", t) for t in (0, 1, 3, 4)]
        assert len(items) == 35
        slot = lambda i: 4096 * ((i + 5) % 8)

        def dma(i):
            m, c = items[i]
            for q in range(4):
                k(f"s_add_u32 m0, s{S_RG}, {slot(i) + 1024 * q}")
                if m == "o":
                    k(f"s_add_u32 s{S_T0}, s{S_OB}, {(16 * (q & 1) + 4 * (q >> 1)) * 1280 + 128 * c}")
                    k(f"buffer_load_dwordx4 v{VS2[q & 1]}, {sr(SO, 4)}, s{S_T0} offen lds")
                else:
                    k(f"s_add_u32 s{S_T0}, s{S_LB if c < 5 else S_RB}, {(64 * (c % 5) + 2 * q) * 8192}")
                    k(f"buffer_load_dwordx4 v{VS[q >> 1]}, {sr({'q': SQ, 'k': SK, 'v': SV}[m], 4)}, s{S_T0} offen lds")

        for i in range(8):
            dma(i)
        claim()
        k(f"v_bfe_u32 v{t0}, v{lane}, 3, 1")
        k(f"v_lshrrev_b32 v{t1}, 5, v{lane}")
        k(f"v_lshl_add_u32 v{t0}, v{t1}, 1, v{t0}")
        k(f"v_bfe_u32 v{t1}, v{lane}, 4, 1")
        k(f"v_lshl_add_u32 v{t0}, v{t1}, 5, v{t0}")
        k(f"v_mul_u32_u24 v{t0}, 1280, v{t0}")
        k(f"v_lshlrev_b32 v{t1}, 1, v{t1}")
        k(f"v_xor_b32 v{t1}, v{t1}, v{lane}")
        k(f"v_and_b32 v{t1}, 7, v{t1}")
        k(f"v_lshl_add_u32 v{VS2[0]}, v{t1}, 4, v{t0}")
        k(f"v_xor_b32 v{VS2[1]}, 64, v{VS2[0]}")
        k(f"s_mul_i32 s{S_T0}, s{S_H}, {128 * 1280}")
        k(f"s_mul_i32 s{S_T1}, s{S_A}, 640")
        k(f"s_add_u32 s{S_T0}, s{S_T0}, s{S_T1}")
        k(f"s_lshr_b32 s{S_T1}, s{S_W}, 1")
        k(f"s_mul_i32 s{S_T1}, s{S_T1}, {64 * 1280}")
        k(f"s_add_u32 s{S_T0}, s{S_T0}, s{S_T1}")
        k(f"s_and_b32 s{S_T1}, s{S_W}, 1")
        k(f"s_mul_i32 s{S_T1}, s{S_T1}, {8 * 1280}")
        k(f"s_add_u32 s{S_OB}, s{S_T0}, s{S_T1}")
        k(f"v_bfe_u32 v{f}, v{lane}, 2, 3")
        k(f"v_lshrrev_b32 v{t0}, 5, v{lane}")
        k(f"v_mul_u32_u24 v{t0}, {LDS_WAVE_W}, v{t0}")
        k(f"v_bfe_u32 v{t1}, v{lane}, 2, 2")
        k(f"v_lshl_add_u32 v{t0}, v{t1}, 8, v{t0}")
        k(f"v_bfe_u32 v{t1}, v{lane}, 4, 1")
        k(f"v_lshl_add_u32 v{t0}, v{t1}, 11, v{t0}")
        k(f"v_and_b32 v{t1}, 3, v{lane}")
        k(f"v_lshl_add_u32 v{t0}, v{t1}, 3, v{t0}")
        k(f"s_lshl_b32 s{S_T0}, s{S_W}, 1")
        k(f"v_xor_b32 v{t1}, s{S_T0}, v{f}")
        k(f"v_lshl_add_u32 v{t0}, v{t1}, 5, v{t0}")
        k(f"v_add_u32 v{VT[0][0]}, {LDS_W}, v{t0}")
        k(f"v_add_u32 v{VT[0][1]}, {LDS_W + 2 * LDS_WAVE_W}, v{t0}")
        k(f"v_xor_b32 v{VT[1][0]}, 32, v{VT[0][0]}")
        k(f"v_xor_b32 v{VT[1][1]}, 32, v{VT[0][1]}")
        k(f"v_lshrrev_b32 v{t0}, 4, v{lane}")
        k(f"v_lshlrev_b32 v{t0}, 10, v{t0}")
        k(f"v_bfe_u32 v{t1}, v{lane}, 2, 2")
        k(f"v_lshl_add_u32 v{t0}, v{t1}, 7, v{t0}")
        k(f"v_and_b32 v{t1}, 3, v{lane}")
        k(f"v_lshl_add_u32 v{t0}, v{t1}, 3, v{t0}")
        k(f"v_bfe_u32 v{t1}, v{lane}, 3, 2")
        k(f"v_xor_b32 v{t1}, s{S_W}, v{t1}")
        k(f"v_lshl_add_u32 v{t0}, v{t1}, 5, v{t0}")
        for q in range(4):
            k(f"v_add_u32 v{VT2[q]}, {LDS_W + q * LDS_WAVE_W}, v{t0}")
        self.consts()
        back = []
        for i in range(36):
            if i < 35:
                k(f"s_waitcnt vmcnt({4 * (min(35, max(8, i + 7)) - i - 1)})")
            k("s_barrier")
            for d, u in back:
                k(f"ds_write_b128 v{V_WL}, {vr(d, 4)} offset:{LDS_OF[u]}")
                k(f"ds_write_b128 v{V_WL}, {vr(d + 4, 4)} offset:{LDS_OF[u] + 1024}")
            back = []
            if i == 35:
                break
            if i >= 1 and i + 7 < 35:
                dma(i + 7)
            m, c = items[i]
            for t in range(2):
                u = ("o", c, t) if m == "o" else (m + str(t), c)
                d = REG_OF[u] if u in REG_OF else 16 + 8 * t + 16 * (i & 1)
                if u in LDS_OF:
                    back.append((d, u))
                    assert u == ("v0", 4) or LDS_OF[u] == slot(i) + 2048 * t
                for jj in range(4):
                    if m == "o":
                        k(f"ds_read_b64_tr_b16 {ur(d + 2 * jj, 2)}, v{VT2[2 * t + (jj >> 1)]} offset:{slot(i) + 512 * (jj & 1)}")
                    else:
                        k(f"ds_read_b64_tr_b16 {ur(d + 2 * jj, 2)}, v{VT[t][jj >> 1]} offset:{slot(i) + 1024 * (jj & 1)}")
            k("s_waitcnt lgkmcnt(0)")
        k("s_waitcnt lgkmcnt(0)")

    def mem0_piece(self, SM):
        k = self.k
        k(f"s_lshr_b32 s{S_T0}, s{S_RHO}, 2")
        k(f"s_lshl_b32 s{S_T0}, s{S_T0}, 5")
        k(f"s_mul_i32 s{S_T1}, s{S_A}, 640")
        k(f"s_add_u32 s{S_T0}, s{S_T0}, s{S_T1}")
        k(f"s_and_b32 s{S_T1}, s{S_RHO}, 3")
        k(f"s_mul_i32 s{S_T1}, s{S_T1}, 2560")
        k(f"s_add_u32 s{S_T0}, s{S_T0}, s{S_T1}")
        k(f"v_lshrrev_b32 v60, 8, v{V_L16}")
        k(f"v_and_b32 v60, 1, v60")
        k(f"v_mul_u32_u24 v60, 1280, v60")
        k(f"v_lshrrev_b32 v61, 1, v{V_L16}")
        k(f"v_and_b32 v61, 24, v61")
        k(f"v_add_u32 v60, v60, v61")
        k(f"buffer_load_dwordx2 v[80:81], v60, {sr(SM, 4)}, s{S_T0} offen")
        k("s_waitcnt vmcnt(0)")
        k(f"v_mov_b32 v60, {SENT | 0x00400040:#x}")
        for r in (80, 81):
            k(f"v_cmp_eq_u32 vcc, s{S_SENT}, v{r}")
            k(f"v_cndmask_b32 v{r}, v{r}, v60, vcc")
        self.widen(80)

    def dump_stamps(self, tag):
        k = self.k
        k("s_waitcnt lgkmcnt(0)")
        k(f"s_sub_u32 s{S_T0}, s{S_STAMP + 2}, s{S_STAMP}")
        k(f"s_add_u32 s{S_STAMP + 4}, s{S_STAMP + 4}, s{S_T0}")

    def write_stamps(self):
        k = self.k
        k(f"v_mov_b32 v60, s{S_STAMP + 4}")
        k(f"v_mov_b32 v61, s{S_CNT}")
        k(f"v_mov_b32 v62, s{S_CL}")
        k(f"v_mov_b32 v63, s{S_CR}")
        k(f"s_lshl_b32 s{S_T0}, s{S_A}, 5")
        k(f"s_add_u32 s{S_T0}, s{S_T0}, s{S_H}")
        k(f"s_lshl_b32 s{S_T0}, s{S_T0}, 2")
        k(f"s_add_u32 s{S_T0}, s{S_T0}, s{S_W}")
        k(f"s_lshl_b32 s{S_T0}, s{S_T0}, 4")
        k(f"s_add_u32 s{S_T0}, s{S_T0}, {WS_STAMP}")
        k(f"s_mov_b64 exec, 1")
        k(f"buffer_store_dwordx4 v[60:63], v{V_L16}, {WS}, s{S_T0} offen")
        k(f"s_mov_b64 exec, -1")
```

```python
import numpy as np

MB = 1 << 20
WS_BYTES = 256 * MB
WS_KV = 0 * MB
WS_QX = 32 * MB
WS_KM = 48 * MB
WS_VM = 52 * MB
WS_MEMR = 56 * MB
WS_INBOX = 58 * MB
WS_MEML = 59 * MB
WS_STAMP = 60 * MB
WS_FLAGS = 61 * MB
FL_PROG = WS_FLAGS
FL_TEAM = WS_FLAGS + 4096
FL_CHAIN = WS_FLAGS + 8192
WS_BQK = 64 * MB
WS_BV = 70 * MB
WS_BO = 74 * MB
WS_PART = 80 * MB
WS_PW = 128 * MB

INBOX_SLOT = 80 * 2048
SENT = 0x7F817F81


def sparse_k(g, j):
    k = 8 * g + (j & 7) + 32 * (j >> 3)
    gA, p, half, low = k >> 4, (k >> 2) & 3, (k >> 1) & 1, k & 1
    return gA, half, 2 * p + low


def mem_d(g, j):
    gA, half, s = sparse_k(g, j)
    return 16 * gA + 8 * half + s


def o_e(mo, g, j):
    gA, half, s = sparse_k(g, j)
    return 32 * (2 * mo + half) + 16 * (s >> 2) + 4 * gA + (s & 3)


def mem_chunk_index():
    rows = np.zeros(512, dtype=np.int64)
    ds = np.zeros(512, dtype=np.int64)
    for lane in range(64):
        gA, rho = lane >> 4, lane & 15
        r, half = 2 * (rho >> 2) + (rho & 1), (rho >> 1) & 1
        for s in range(8):
            rows[lane * 8 + s] = r
            ds[lane * 8 + s] = 16 * gA + 8 * half + s
    return rows, ds


def k_frag_index():
    tok = np.zeros(4096, dtype=np.int64)
    e = np.zeros(4096, dtype=np.int64)
    for w in range(4):
        for g in range(4):
            for t in range(32):
                for s in range(8):
                    i = ((w * 4 + g) * 32 + t) * 8 + s
                    tok[i] = t
                    e[i] = 32 * w + 4 * g + (s >> 1) + 16 * (s & 1)
    return tok, e


def v_frag_index():
    tok = np.zeros(4096, dtype=np.int64)
    e = np.zeros(4096, dtype=np.int64)
    for w in range(4):
        for u in range(2):
            for hi in range(2):
                for e5 in range(32):
                    for s in range(8):
                        i = (((w * 2 + u) * 2 + hi) * 32 + e5) * 8 + s
                        b, beta = s >> 2, s & 3
                        tok[i] = 8 * beta + 4 * hi + 2 * u + b
                        e[i] = 32 * w + e5
    return tok, e


def km_frag_index():
    key = np.zeros(1024, dtype=np.int64)
    e = np.zeros(1024, dtype=np.int64)
    for w in range(4):
        for g in range(4):
            for t in range(8):
                for s in range(8):
                    i = ((w * 4 + g) * 8 + t) * 8 + s
                    key[i] = t
                    e[i] = 32 * w + 4 * g + (s >> 1) + 16 * (s & 1)
    return key, e


DBG_OVF, DBG_INIT, DBG_BAR1, DBG_BAR2, DBG_BARA = 9, 10, 11, 12, 13
XA, XB = 5, 7


def dbg_word(x):
    return 32 + x if x in (XA, XB) else x
```

```python
import math
from asmlib import vr, ur, sr, ar
from layout import *
from chain import S_WS, S_W, S_SPIN, S_T0, S_T1, S_T2, S_T3, S_TA, WS, OOB, fbits

S_WI = 8
S_DBG = 84
S_OUT = 88
S_WT = 92
S_X = 96
DBG, OUT, WT, XS = sr(S_DBG, 4), sr(S_OUT, 4), sr(S_WT, 4), sr(S_X, 4)
S_WB = 13
S_XO, S_XST, S_OO, S_OST, S_N, S_FL, S_IT, S_BUF, S_BUFD, S_LEFT = 14, 15, 16, 17, 18, 19, 20, 21, 22, 23
S_RING = 24
S_C = 25
S_M = 26
S_SEG, S_TEAM, S_J, S_WANT = 28, 29, 30, 31
S_U0, S_U1, S_U2, S_U3 = 32, 33, 34, 35
S_BLK = 44

V_LANE, V_L16, V_TR, V_S0, V_S1, V_XS = 0, 1, 2, 3, 4, 5
V_XR = 6
V_XA = 10
V_O0, V_O1, V_T0, V_T1, V_T2, V_T3 = 14, 15, 16, 17, 18, 19
WREG = 192
NEG = fbits(-1.0e30)


class Worker:
    def __init__(self, k, **opt):
        self.k = k
        self.opt = opt

    def spin(self):
        self.k(f"s_sub_u32 s{S_SPIN}, s{S_SPIN}, 1")
        self.k(f"s_cbranch_scc1 L_abort")

    def srd(self, s, karg, nbytes):
        k = self.k
        k(f"s_load_dwordx2 {sr(s, 2)}, s[0:1], {karg}")
        k("s_waitcnt lgkmcnt(0)")
        k(f"s_mov_b32 s{s + 2}, {nbytes}")
        k(f"s_mov_b32 s{s + 3}, 0x20000")

    def base_consts(self):
        k = self.k
        k(f"v_lshlrev_b32 v{V_L16}, 4, v{V_LANE}")
        k(f"s_lshl_b32 s{S_RING}, s{S_W}, 15")

    def tr_addr(self, colmap):
        k = self.k
        k(f"v_lshrrev_b32 v{V_T0}, 5, v{V_LANE}")
        k(f"v_lshlrev_b32 v{V_T0}, 9, v{V_T0}")
        k(f"v_and_b32 v{V_T1}, 12, v{V_LANE}")
        k(f"v_lshl_add_u32 v{V_T0}, v{V_T1}, 4, v{V_T0}")
        k(f"v_lshrrev_b32 v{V_T1}, 2, v{V_LANE}")
        k(f"v_and_b32 v{V_T1}, 4, v{V_T1}")
        k(f"v_and_or_b32 v{V_T1}, v{V_LANE}, 3, v{V_T1}")
        if colmap == "clamp":
            k(f"v_min_u32 v{V_T1}, 4, v{V_T1}")
        elif colmap == "wide":
            k(f"v_and_b32 v{V_T2}, 1, v{V_T1}")
            k(f"v_lshrrev_b32 v{V_T1}, 1, v{V_T1}")
            k(f"v_lshl_add_u32 v{V_T1}, v{V_T2}, 2, v{V_T1}")
        k(f"v_lshl_add_u32 v{V_T0}, v{V_T1}, 3, v{V_T0}")
        k(f"v_add_u32 v{V_TR}, s{S_RING}, v{V_T0}")

    def src_rows(self, dst, stride, rowmap):
        k = self.k
        if rowmap == "id":
            k(f"v_lshrrev_b32 v{V_T0}, 2, v{V_LANE}")
        else:
            mb, mh, add = (8, 4, 0) if rowmap == "perm" else (40, 20, 16)
            k(f"v_bfe_u32 v{V_T0}, v{V_LANE}, 2, 2")
            k(f"v_bfe_u32 v{V_T1}, v{V_LANE}, 4, 1")
            k(f"v_mad_u32_u24 v{V_T0}, v{V_T1}, {mb}, v{V_T0}")
            k(f"v_lshrrev_b32 v{V_T1}, 5, v{V_LANE}")
            k(f"v_mad_u32_u24 v{V_T0}, v{V_T1}, {mh}, v{V_T0}")
            if add:
                k(f"v_add_u32 v{V_T0}, {add}, v{V_T0}")
        k(f"v_mul_u32_u24 v{V_T0}, {stride}, v{V_T0}")
        k(f"v_and_b32 v{V_T1}, 3, v{V_LANE}")
        k(f"v_lshl_add_u32 v{dst}, v{V_T1}, 4, v{V_T0}")

    def load_weights(self, frags, lines=False, first=None):
        k = self.k
        n = len(frags)

        def dma(i):
            v, c, _ = frags[i]
            k(f"s_add_u32 m0, s{S_RING}, {1024 * (i % 32)}")
            k(f"s_add_u32 s{S_T0}, s{S_WB}, {c}")
            k(f"buffer_load_dwordx4 v{v}, {WT}, s{S_T0} offen lds")

        if first is None:
            k("s_waitcnt vmcnt(0) lgkmcnt(0)")
            k("s_barrier")
        for i in range(32):
            dma(i)
        if first is not None:
            first()
        for b in range(0, n, 8):
            left = min(n, b + 32) - (b + 8)
            k(f"s_waitcnt vmcnt({left})")
            for i in range(b, b + 8):
                d = frags[i][2]
                a, o, m = ([V_TR, V_S1][i & 1], 1024 * ((i % 32) & ~1), 512) if lines else (V_TR, 1024 * (i % 32), 256)
                k(f"ds_read_b64_tr_b16 {ur(d, 2)}, v{a} offset:{o}")
                k(f"ds_read_b64_tr_b16 {ur(d + 2, 2)}, v{a} offset:{o + m}")
                if i % 4 == 3:
                    k("s_waitcnt lgkmcnt(0)")
            for i in range(b + 32, min(n, b + 40)):
                dma(i)
        k("s_barrier")

    def x_consts(self, linear):
        k = self.k
        if linear:
            k(f"s_lshl_b32 s{S_T0}, s{S_W}, 10")
            k(f"v_add_u32 v{V_XS}, s{S_T0}, v{V_L16}")
            for q in range(4):
                k(f"v_add_u32 v{V_XR + q}, {1024 * q}, v{V_L16}")
            return
        k(f"s_lshl_b32 s{S_T0}, s{S_W}, 3")
        k(f"v_lshrrev_b32 v{V_T0}, 3, v{V_LANE}")
        k(f"v_add_u32 v{V_T0}, s{S_T0}, v{V_T0}")
        k(f"v_lshrrev_b32 v{V_T1}, 1, v{V_T0}")
        k(f"v_xor_b32 v{V_T1}, v{V_T1}, v{V_LANE}")
        k(f"v_and_b32 v{V_T1}, 7, v{V_T1}")
        k(f"v_mul_u32_u24 v{V_T0}, 1280, v{V_T0}")
        k(f"v_lshl_add_u32 v{V_XS}, v{V_T1}, 4, v{V_T0}")
        k(f"v_and_b32 v{V_T0}, 31, v{V_LANE}")
        k(f"v_bfe_u32 v{V_T1}, v{V_LANE}, 1, 3")
        k(f"v_lshrrev_b32 v{V_T2}, 5, v{V_LANE}")
        k(f"v_xor_b32 v{V_T1}, v{V_T1}, v{V_T2}")
        k(f"v_lshlrev_b32 v{V_T0}, 7, v{V_T0}")
        for q in range(4):
            k(f"v_xor_b32 v{V_T2}, {2 * q}, v{V_T1}")
            k(f"v_lshl_add_u32 v{V_XR + q}, v{V_T2}, 4, v{V_T0}")

    def x_dma(self, linear):
        srd, sfx, kbs = (WS, " sc1", 4096) if linear else (XS, "", 128)
        g = []
        for kb in range(10):
            g.append([f"s_add_u32 m0, s{S_BUFD}, {4096 * kb}",
                      f"s_add_u32 s{S_T0}, s{S_T1}, {kbs * kb}",
                      f"buffer_load_dwordx4 v{V_XS}, {srd}, s{S_T0} offen{sfx} lds"])
        return g

    def x_next(self):
        k = self.k
        k(f"s_cmp_gt_i32 s{S_LEFT}, 0")
        k(f"s_cselect_b32 s{S_T1}, s{S_XO}, {OOB:#x}")
        k(f"s_sub_u32 s{S_LEFT}, s{S_LEFT}, 1")
        k(f"s_add_u32 s{S_XO}, s{S_XO}, s{S_XST}")

    def buf_next(self, s, lo):
        k = self.k
        k(f"s_add_u32 s{s}, s{s}, 40960")
        k(f"s_cmp_ge_u32 s{s}, {3 * 40960}")
        k(f"s_cselect_b32 s{s}, s{lo}, s{s}" if lo is not None else f"s_cselect_b32 s{s}, 0, s{s}")

    def gemm_prologue(self, linear):
        k = self.k
        k(f"s_mov_b32 s{S_LEFT}, s{S_N}")
        k(f"s_lshl_b32 s{S_U0}, s{S_W}, 10")
        k(f"s_mov_b32 s{S_BUFD}, s{S_U0}")
        k(f"s_mov_b32 s{S_BUF}, 0")
        k(f"s_mov_b32 s{S_IT}, 0")
        for _ in range(2):
            self.x_next()
            for g in self.x_dma(linear):
                for x in g: k(x)
            self.buf_next(S_BUFD, S_U0)
        k("s_waitcnt vmcnt(10)")

    def gemm_loop(self, kind):
        k = self.k
        linear = kind == "out"
        swap = kind in ("v", "bv")
        ACC, XF, PK = [128, 144], 160, 176
        top = k.label("gemm")
        k(f"{top}:")
        k(f"s_sub_u32 s{S_T2}, s{S_IT}, 1")
        k(f"s_max_i32 s{S_T2}, s{S_T2}, 0")
        if kind in ("qk", "v"):
            later = k.label("later")
            k(f"s_cmp_lg_u32 s{S_IT}, 1")
            k(f"s_cbranch_scc1 {later}")
            k("s_waitcnt vmcnt(0)")
            k(f"s_mov_b32 s{S_T2}, 1")
            k(f"{later}:")
        k("s_waitcnt vmcnt(15)")
        k("s_barrier")
        for q in range(4):
            k(f"v_add_u32 v{V_XA + q}, s{S_BUF}, v{V_XR + q}")
        k(f"v_mov_b32 v{V_T0}, s{S_T2}")

        def rd(ks):
            k(f"ds_read_b128 {vr(XF + 4 * (ks % 4), 4)}, v{V_XA + (ks & 3)} offset:{4096 * (ks >> 2)}")

        for ks in range(3):
            rd(ks)
        k("s_mov_b64 exec, 1")
        k(f"buffer_store_dword v{V_T0}, v{V_L16}, {WS}, s{S_FL} offen sc1")
        k("s_mov_b64 exec, -1")
        self.x_next()
        dm = self.x_dma(linear)
        for ks in range(40):
            k(f"s_waitcnt lgkmcnt({min(2, 39 - ks)})")
            for T in range(2):
                w, x = ur(WREG + 4 * (T * 40 + ks), 4), vr(XF + 4 * (ks % 4), 4)
                a, b = (x, w) if swap else (w, x)
                c = "0" if ks == 0 else vr(ACC[T], 16)
                k(f"v_mfma_f32_32x32x16_bf16 {vr(ACC[T], 16)}, {a}, {b}, {c}")
                if T == 0 and ks + 3 < 40:
                    rd(ks + 3)
                if T == 1 and ks % 3 == 0 and dm:
                    for x_ in dm.pop(0): k(x_)
        assert not dm
        self.buf_next(S_BUFD, S_U0)
        self.buf_next(S_BUF, None)
        k(f"s_add_u32 s{S_IT}, s{S_IT}, 1")
        for T in range(2):
            D, P = ACC[T], PK + 8 * T
            cv = lambda d, lo, hi: k(f"v_cvt_pk_bf16_f32 v{P + d}, v{D + lo}, v{D + hi}")
            if kind == "qk":
                for i in range(16):
                    k(f"v_mul_f32 v{D + i}, s{S_C}, v{D + i}")
                for u in range(2):
                    for i in range(4):
                        cv(4 * u + i, 4 * u + i, 4 * u + 8 + i)
            elif swap:
                for u in range(2):
                    cv(4 * u, 2 * u, 4 + 2 * u)
                    cv(4 * u + 1, 8 + 2 * u, 12 + 2 * u)
                    cv(4 * u + 2, 2 * u + 1, 5 + 2 * u)
                    cv(4 * u + 3, 9 + 2 * u, 13 + 2 * u)
                if kind == "bv":
                    for i in range(8):
                        k(f"v_cndmask_b32 v{P + i}, v{P + i}, v{V_O1}, {sr(S_M, 2)}")
            else:
                for i in range(8 if kind == "out" else 6):
                    cv(i, 2 * i, 2 * i + 1)
            if kind in ("qk", "v", "bv"):
                for u in range(2):
                    k(f"buffer_store_dwordx4 {vr(P + 4 * u, 4)}, v{V_L16}, {WS}, s{S_OO} offen offset:{2048 * T + 1024 * u} sc1")
            elif kind == "bqk":
                k(f"buffer_store_dwordx4 {vr(P, 4)}, v{V_L16}, {WS}, s{S_OO} offen offset:{1280 * T} sc1")
                k(f"buffer_store_dwordx2 {vr(P + 4, 2)}, v{V_O0}, {WS}, s{S_OO} offen offset:{1280 * T + 1024} sc1")
            else:
                for u in range(2):
                    k(f"buffer_store_dwordx4 {vr(P + 4 * u, 4)}, v{V_O0}, {OUT}, s{S_OO} offen offset:{64 * T + 16 * u}")
        k(f"s_add_u32 s{S_OO}, s{S_OO}, s{S_OST}")
        k(f"s_cmp_lt_u32 s{S_IT}, s{S_N}")
        k(f"s_cbranch_scc1 {top}")

    def gemm_finish(self):
        k = self.k
        k("s_waitcnt vmcnt(0)")
        k("s_barrier")
        k(f"v_mov_b32 v{V_T0}, s{S_N}")
        k("s_mov_b64 exec, 1")
        k(f"buffer_store_dword v{V_T0}, v{V_L16}, {WS}, s{S_FL} offen sc1")
        k("s_mov_b64 exec, -1")

    def poll(self, srd, soff, want, mask=None, nd=1, sh=2):
        k = self.k
        lp, done = k.label("poll"), k.label("polled")
        k(f"s_cmp_lg_u32 s{S_W}, 0")
        k(f"s_cbranch_scc1 {done}")
        k(f"v_and_b32 v{V_T1}, {nd - 1}, v{V_LANE}")
        k(f"v_lshlrev_b32 v{V_T1}, {sh}, v{V_T1}")
        k(f"{lp}:")
        k(f"buffer_load_dword v{V_T0}, v{V_T1}, {srd}, {soff} offen sc1")
        k("s_waitcnt vmcnt(0)")
        if mask:
            k(f"v_and_b32 v{V_T0}, {mask:#x}, v{V_T0}")
        k(f"v_cmp_gt_u32 vcc, {want}, v{V_T0}")
        k(f"s_cbranch_vccz {done}")
        self.spin()
        k("s_sleep 2")
        k(f"s_branch {lp}")
        k(f"{done}:")
        k("s_barrier")

    def arrive(self, srd, soff):
        k = self.k
        skip = k.label("arr")
        k("s_waitcnt vmcnt(0)")
        k("s_barrier")
        k(f"s_cmp_lg_u32 s{S_W}, 0")
        k(f"s_cbranch_scc1 {skip}")
        k(f"v_mov_b32 v{V_T0}, 1")
        k("s_mov_b64 exec, 1")
        k(f"buffer_atomic_add v{V_T0}, v{V_L16}, {srd}, {soff} offen")
        k("s_mov_b64 exec, -1")
        k(f"{skip}:")

    def init_flags(self):
        k = self.k
        k(f"s_lshr_b32 s{S_T0}, s{S_WI}, 2")
        k(f"s_lshl_b32 s{S_T1}, s{S_T0}, 7")
        k(f"s_and_b32 s{S_T2}, s{S_WI}, 3")
        k(f"s_lshl_b32 s{S_T2}, s{S_T2}, 2")
        k(f"s_add_u32 s{S_T1}, s{S_T1}, s{S_T2}")
        k(f"s_add_u32 s{S_T1}, s{S_T1}, {FL_PROG}")
        k(f"s_lshl_b32 s{S_T2}, s{S_W}, 5")
        k(f"s_or_b32 s{S_T0}, s{S_T0}, s{S_T2}")
        k(f"s_cmp_lt_u32 s{S_T0}, 32")
        k(f"s_cselect_b32 s{S_FL}, s{S_T1}, {OOB:#x}")
        k(f"s_lshr_b32 s{S_T0}, s{S_WI}, 4")
        k(f"s_lshl_b32 s{S_T0}, s{S_T0}, 7")
        k(f"s_add_u32 s{S_TEAM}, s{S_T0}, {FL_TEAM}")
        k(f"s_and_b32 s{S_J}, s{S_WI}, 15")
        k(f"s_or_b32 s{S_T0}, s{S_J}, s{S_W}")
        k(f"s_cselect_b32 s{S_T1}, {OOB:#x}, s{S_TEAM}")
        k(f"v_mov_b32 v{V_T0}, 0")
        k("s_mov_b64 exec, 1")
        k(f"buffer_store_dword v{V_T0}, v{V_L16}, {WS}, s{S_FL} offen sc1")
        k(f"buffer_store_dword v{V_T0}, v{V_L16}, {WS}, s{S_T1} offen sc1")
        k("s_mov_b64 exec, -1")
        k(f"s_lshl_b32 s{S_T0}, s{S_WI}, 2")
        k(f"s_add_u32 s{S_U0}, s{S_T0}, s{S_W}")
        k(f"s_lshl_b32 s{S_T1}, s{S_U0}, 13")
        k(f"s_add_u32 s{S_T1}, s{S_T1}, {WS_MEMR}")
        k(f"s_sub_u32 s{S_T2}, s{S_U0}, 256")
        k(f"s_mul_i32 s{S_T3}, s{S_T2}, 5120")
        k(f"s_add_u32 s{S_T3}, s{S_T3}, {WS_INBOX}")
        k(f"s_cmp_lt_u32 s{S_U0}, 256")
        k(f"s_cselect_b32 s{S_T1}, s{S_T1}, s{S_T3}")
        k(f"s_sub_u32 s{S_T2}, s{S_U0}, 384")
        k(f"s_lshl_b32 s{S_T3}, s{S_T2}, 13")
        k(f"s_add_u32 s{S_T3}, s{S_T3}, {WS_MEML}")
        k(f"s_cmp_lt_u32 s{S_U0}, 384")
        k(f"s_cselect_b32 s{S_T1}, s{S_T1}, s{S_T3}")
        k(f"s_cmp_lt_u32 s{S_U0}, 392")
        k(f"s_cselect_b32 s{S_T1}, s{S_T1}, {OOB:#x}")
        for i in range(4):
            k(f"v_mov_b32 v{20 + i}, {SENT:#x}")
        for i in range(4):
            k(f"buffer_store_dwordx4 v[20:23], v{V_L16}, {WS}, s{S_T1} offen offset:{1024 * i} sc1")
        k(f"s_add_u32 s{S_T1}, s{S_T1}, 4096")
        k(f"buffer_store_dwordx4 v[20:23], v{V_L16}, {WS}, s{S_T1} offen sc1")
        k(f"s_sub_u32 s{S_T2}, s{S_U0}, 392")
        k(f"s_lshl_b32 s{S_T3}, s{S_T2}, 10")
        k(f"s_add_u32 s{S_T3}, s{S_T3}, {FL_CHAIN}")
        k(f"s_cmp_lt_u32 s{S_T2}, 2")
        k(f"s_cselect_b32 s{S_T1}, s{S_T3}, {OOB:#x}")
        k(f"buffer_store_dword v{V_T0}, v{V_L16}, {WS}, s{S_T1} offen sc1")
        self.srd(S_OUT, 40, 4096 * 1280)
        k(f"v_lshlrev_b32 v{V_T1}, 7, v{V_LANE}")
        k(f"s_lshl_b32 s{S_T0}, s{S_U0}, 13")
        k(f"buffer_load_dword v24, v{V_T1}, {OUT}, s{S_T0} offen")
        self.srd(S_OUT, 80, 2048 * 2560)

    def report_init(self, ch):
        k = self.k
        nopr, skip = k.label("nopr"), k.label("noinit")
        k("s_waitcnt vmcnt(0)")
        k("s_barrier")
        k(f"s_cmp_lg_u32 s{S_W}, 0")
        k(f"s_cbranch_scc1 {skip}")
        k(f"s_mov_b32 s{S_U1}, 0")
        k(f"s_cmp_lg_u32 s{S_WI}, 191")
        k(f"s_cbranch_scc1 {nopr}")
        ch.probe_polarity(S_U1)
        k(f"{nopr}:")
        k(f"s_lshl_b32 s{S_U1}, s{S_U1}, 16")
        k(f"s_add_u32 s{S_U1}, s{S_U1}, 1")
        k(f"v_mov_b32 v{V_T0}, s{S_U1}")
        k("s_mov_b64 exec, 1")
        k(f"buffer_atomic_add v{V_T0}, v{V_L16}, {DBG}, {4 * DBG_INIT} offen")
        k("s_mov_b64 exec, -1")
        k(f"{skip}:")

    def phase_aqkv(self, ch, claim):
        k = self.k
        k(f"s_load_dwordx2 {sr(S_U0, 2)}, s[0:1], 16")
        k(f"s_load_dwordx2 {sr(S_U2, 2)}, s[0:1], 24")
        k(f"s_load_dwordx2 {sr(S_TA, 2)}, s[0:1], 32")
        self.srd(S_X, 0, 2048 * 1280)
        k(f"s_lshr_b32 s{S_T0}, s{S_WI}, 2")
        k(f"s_cmp_lt_u32 s{S_W}, 2")
        k(f"s_cselect_b32 s{S_WT}, s{S_U2}, s{S_TA}")
        k(f"s_cselect_b32 s{S_WT + 1}, s{S_U2 + 1}, s{S_TA + 1}")
        k(f"s_cselect_b32 s{S_SEG}, 0, 1")
        k(f"s_cmp_lt_u32 s{S_T0}, 32")
        k(f"s_cselect_b32 s{S_WT}, s{S_WT}, s{S_U0}")
        k(f"s_cselect_b32 s{S_WT + 1}, s{S_WT + 1}, s{S_U0 + 1}")
        k(f"s_cselect_b32 s{S_SEG}, s{S_SEG}, 0")
        k(f"s_cselect_b32 s{S_C}, {fbits(math.log2(math.e) / math.sqrt(128.0)):#x}, 1.0")
        k(f"s_mov_b32 s{S_WT + 2}, {640 * 8192}")
        k(f"s_mov_b32 s{S_WT + 3}, 0x20000")
        k(f"s_and_b32 s{S_T1}, s{S_W}, 1")
        k(f"s_lshl_b32 s{S_T1}, s{S_T1}, 7")
        k(f"s_lshl_b32 s{S_T2}, s{S_T0}, 8")
        k(f"s_add_u32 s{S_T1}, s{S_T1}, s{S_T2}")
        k(f"s_sub_u32 s{S_T2}, s{S_T0}, 32")
        k(f"s_lshl_b32 s{S_T2}, s{S_T2}, 2")
        k(f"s_add_u32 s{S_T2}, s{S_T2}, s{S_W}")
        k(f"s_lshl_b32 s{S_T3}, s{S_T2}, 7")
        k(f"s_cmp_lt_u32 s{S_T0}, 32")
        k(f"s_cselect_b32 s{S_WB}, s{S_T1}, s{S_T3}")
        k(f"s_lshl_b32 s{S_T2}, s{S_T2}, 12")
        k(f"s_add_u32 s{S_T2}, s{S_T2}, {WS_QX}")
        k(f"s_lshl_b32 s{S_T1}, s{S_T0}, 2")
        k(f"s_add_u32 s{S_T1}, s{S_T1}, s{S_W}")
        k(f"s_lshl_b32 s{S_T1}, s{S_T1}, 12")
        k(f"s_add_u32 s{S_T1}, s{S_T1}, {WS_KV}")
        k(f"s_cmp_lt_u32 s{S_T0}, 32")
        k(f"s_cselect_b32 s{S_OO}, s{S_T1}, s{S_T2}")
        k(f"s_cselect_b32 s{S_T3}, 19, 18")
        k(f"s_and_b32 s{S_T1}, s{S_WI}, 3")
        k(f"s_lshl_b32 s{S_T2}, s{S_T1}, s{S_T3}")
        k(f"s_add_u32 s{S_OO}, s{S_OO}, s{S_T2}")
        k(f"s_lshl_b32 s{S_OST}, 4, s{S_T3}")
        k(f"s_mul_i32 s{S_XO}, s{S_T1}, 40960")
        k(f"s_mov_b32 s{S_XST}, {4 * 40960}")
        k(f"s_mov_b32 s{S_N}, 16")
        k(f"v_lshrrev_b32 v{V_T0}, 3, v{V_LANE}")
        k(f"v_lshlrev_b32 v{V_T0}, 13, v{V_T0}")
        k(f"v_lshrrev_b32 v{V_T1}, 2, v{V_LANE}")
        k(f"v_and_b32 v{V_T1}, 4, v{V_T1}")
        k(f"v_xor_b32 v{V_T1}, v{V_T1}, v{V_LANE}")
        k(f"v_and_b32 v{V_T1}, 7, v{V_T1}")
        k(f"v_lshl_add_u32 v{V_S0}, v{V_T1}, 4, v{V_T0}")

        def first():
            claim()
            k(f"v_lshrrev_b32 v{V_T0}, 5, v{V_LANE}")
            k(f"v_lshlrev_b32 v{V_T0}, 10, v{V_T0}")
            k(f"v_bfe_u32 v{V_T1}, v{V_LANE}, 2, 2")
            k(f"v_lshl_add_u32 v{V_T0}, v{V_T1}, 7, v{V_T0}")
            k(f"v_bfe_u32 v{V_T1}, v{V_LANE}, 3, 1")
            k(f"v_lshl_add_u32 v{V_T0}, v{V_T1}, 6, v{V_T0}")
            k(f"v_bfe_u32 v{V_T1}, v{V_LANE}, 4, 1")
            k(f"v_lshl_add_u32 v{V_T0}, v{V_T1}, 5, v{V_T0}")
            k(f"v_and_b32 v{V_T1}, 3, v{V_LANE}")
            k(f"v_lshl_add_u32 v{V_T0}, v{V_T1}, 3, v{V_T0}")
            k(f"v_add_u32 v{V_TR}, s{S_RING}, v{V_T0}")
            k(f"v_xor_b32 v{V_S1}, 64, v{V_TR}")
            self.x_consts(False)
            self.mark(0)
            self.init_flags()

        self.load_weights([(V_S0, (ks * 16 + 8 * T) * 8192, WREG + 4 * (T * 40 + ks)) for ks in range(40) for T in range(2)], lines=True, first=first)
        self.report_init(ch)
        k("s_barrier")
        if self.opt.get("noworkers"):
            k("s_endpgm")
        self.mark(1)
        self.gemm_prologue(False)
        lv, le = k.label("aq_v"), k.label("aq_e")
        k(f"s_cmp_eq_u32 s{S_SEG}, 1")
        k(f"s_cbranch_scc1 {lv}")
        self.gemm_loop("qk")
        k(f"s_branch {le}")
        k(f"{lv}:")
        self.gemm_loop("v")
        k(f"{le}:")
        self.gemm_finish()
        k(f"s_mov_b32 s{S_FL}, {OOB:#x}")

    def phase_bqkv(self):
        k = self.k
        k("; ---- sliding-window branch: q, k, v")
        self.srd(S_X, 56, 2048 * 1280)
        self.srd(S_WT, 64, 640 * 3840)
        k(f"s_lshr_b32 s{S_T0}, s{S_WI}, 4")
        k(f"s_lshl_b32 s{S_T1}, s{S_T0}, 2")
        k(f"s_add_u32 s{S_T1}, s{S_T1}, s{S_W}")
        k(f"s_mul_i32 s{S_WB}, s{S_T1}, 80")
        k(f"s_lshr_b32 s{S_SEG}, s{S_T0}, 2")
        k(f"s_and_b32 s{S_T1}, s{S_T1}, 15")
        k(f"s_and_b32 s{S_T2}, s{S_WI}, 15")
        k(f"s_mul_i32 s{S_XO}, s{S_T2}, 40960")
        k(f"s_mov_b32 s{S_XST}, {16 * 40960}")
        k(f"s_mov_b32 s{S_N}, 4")
        k(f"s_lshl_b32 s{S_T2}, s{S_T2}, 4")
        k(f"s_add_u32 s{S_T1}, s{S_T1}, s{S_T2}")
        k(f"s_mul_i32 s{S_T2}, s{S_T1}, 2560")
        k(f"s_mul_i32 s{S_T3}, s{S_SEG}, {3 * MB}")
        k(f"s_add_u32 s{S_T2}, s{S_T2}, s{S_T3}")
        k(f"s_add_u32 s{S_T2}, s{S_T2}, {WS_BQK}")
        k(f"s_lshl_b32 s{S_T1}, s{S_T1}, 12")
        k(f"s_add_u32 s{S_T1}, s{S_T1}, {WS_BV}")
        k(f"s_mov_b32 s{S_OST}, {16 * 32 * 1280}")
        k(f"s_cmp_eq_u32 s{S_SEG}, 2")
        k(f"s_cselect_b32 s{S_OO}, s{S_T1}, s{S_T2}")
        k(f"s_cselect_b32 s{S_OST}, {16 * 32 * 2048}, s{S_OST}")
        k(f"s_mov_b32 s{S_M}, 0xfff00000")
        k(f"s_mov_b32 s{S_M + 1}, 0xfff00000")
        k(f"v_mov_b32 v{V_O1}, 0x3f803f80")
        k(f"v_lshlrev_b32 v{V_T0}, 3, v{V_LANE}")
        k(f"v_and_b32 v{V_T1}, 32, v{V_LANE}")
        k(f"v_lshl_add_u32 v{V_O0}, v{V_T1}, 25, v{V_T0}")
        self.tr_addr("clamp")
        self.src_rows(V_S0, 3840, "id")
        self.load_weights([(V_S0, ks * 16 * 3840 + 40 * T, WREG + 4 * (T * 40 + ks)) for ks in range(40) for T in range(2)])
        self.mark(3)
        self.gemm_prologue(False)
        lv, le = k.label("bq_v"), k.label("bq_e")
        k(f"s_cmp_eq_u32 s{S_SEG}, 2")
        k(f"s_cbranch_scc1 {lv}")
        self.gemm_loop("bqk")
        k(f"s_branch {le}")
        k(f"{lv}:")
        self.gemm_loop("bv")
        k(f"{le}:")

    def out_addr(self, dst):
        k = self.k
        k(f"v_and_b32 v{V_T0}, 31, v{V_LANE}")
        k(f"v_mul_u32_u24 v{V_T0}, 2560, v{V_T0}")
        k(f"v_and_b32 v{V_T1}, 32, v{V_LANE}")
        k(f"v_add_u32 v{dst}, v{V_T0}, v{V_T1}")

    def phase_bout_load(self):
        k = self.k
        k("; ---- sliding-window branch: output projection")
        self.srd(S_WT, 72, 640 * 1280)
        k(f"s_lshr_b32 s{S_T0}, s{S_WI}, 6")
        k(f"s_lshl_b32 s{S_T0}, s{S_T0}, 2")
        k(f"s_add_u32 s{S_T0}, s{S_T0}, s{S_W}")
        k(f"s_lshl_b32 s{S_WB}, s{S_T0}, 7")
        k(f"s_and_b32 s{S_T1}, s{S_WI}, 63")
        k(f"s_mul_i32 s{S_XO}, s{S_T1}, 40960")
        k(f"s_add_u32 s{S_XO}, s{S_XO}, {WS_BO}")
        k(f"s_mul_i32 s{S_T1}, s{S_T1}, {32 * 2560}")
        k(f"s_add_u32 s{S_T1}, s{S_T1}, s{S_WB}")
        k(f"s_add_u32 s{S_T1}, s{S_T1}, 1280")
        k(f"s_cmp_lt_u32 s{S_T0}, 10")
        k(f"s_cselect_b32 s{S_OO}, s{S_T1}, {OOB:#x}")
        k(f"s_mov_b32 s{S_OST}, 0")
        k(f"s_mov_b32 s{S_XST}, 0")
        k(f"s_mov_b32 s{S_N}, 1")
        self.out_addr(V_O0)
        self.tr_addr("wide")
        self.src_rows(V_S0, 1280, "perm")
        self.src_rows(V_S1, 1280, "last")
        self.x_consts(True)
        fr = []
        for ks in range(40):
            hq, n = divmod(ks, 5)
            for T in range(2):
                fr.append((V_S0 if n < 4 else V_S1, (80 * hq + (20 * n if n < 4 else 0)) * 1280 + 64 * T, WREG + 4 * (T * 40 + ks)))
        self.load_weights(fr)

    def phase_bout(self):
        self.gemm_prologue(True)
        self.gemm_loop("out")

    def bias_tile(self, dst, op):
        k = self.k
        k(f"v_and_b32 v{V_T0}, 31, v{V_LANE}")
        k(f"v_lshrrev_b32 v{V_T1}, 5, v{V_LANE}")
        k(f"v_lshlrev_b32 v{V_T1}, 2, v{V_T1}")
        k(f"v_sub_u32 v{V_T0}, v{V_T0}, v{V_T1}")
        k(f"v_mov_b32 v{V_T1}, {NEG:#x}")
        for i in range(16):
            k(f"v_cmp_{op}_i32 vcc, {8 * (i >> 2) + (i & 3)}, v{V_T0}")
            k(f"v_cndmask_b32 v{dst + i}, v{V_T1}, 0, vcc")

    def pack_p(self, dst, D):
        k = self.k
        for u in range(2):
            for n, (lo, hi) in enumerate(((2 * u, 4 + 2 * u), (8 + 2 * u, 12 + 2 * u), (2 * u + 1, 5 + 2 * u), (9 + 2 * u, 13 + 2 * u))):
                k(f"v_cvt_pk_bf16_f32 v{dst + 4 * u + n}, v{D + lo}, v{D + hi}")

    def half_reduce(self, op, r, t):
        k = self.k
        k(f"v_mov_b32 v{t}, v{r}")
        k(f"v_permlane32_swap_b32 v{r}, v{t}")
        k(f"v_{op}_f32 v{r}, v{r}, v{t}")

    def phase_battn(self):
        k = self.k
        k("; ---- sliding-window attention: one segment x four heads per wave")
        done = k.label("battn_done")
        k(f"s_cmp_ge_u32 s{S_WI}, 128")
        k(f"s_cbranch_scc1 {done}")
        S, BC, BW, O, Q, PK, OP = 20, 164, 180, 196, [212, 218], [224, 232], 240
        VA, VB = V_S0, V_S1
        k(f"s_lshr_b32 s{S_SEG}, s{S_WI}, 3")
        k(f"s_lshl_b32 s{S_SEG}, s{S_SEG}, 2")
        k(f"s_add_u32 s{S_SEG}, s{S_SEG}, s{S_W}")
        k(f"s_and_b32 s{S_U3}, s{S_WI}, 7")
        k(f"s_mov_b32 s{S_C}, {fbits(math.log2(math.e) / math.sqrt(20.0)):#x}")
        for j in range(9):
            k(f"s_add_i32 s{S_T0}, s{S_SEG}, {j - 8}")
            k(f"s_lshl_b32 s{S_T1}, s{S_T0}, 3")
            k(f"s_add_u32 s{S_T1}, s{S_T1}, s{S_U3}")
            k(f"s_lshl_b32 s{S_T1}, s{S_T1}, 2")
            k(f"s_cmp_ge_i32 s{S_T0}, 0")
            k(f"s_cselect_b32 s{S_BLK + j}, s{S_T1}, 0x100000")
        k(f"v_lshlrev_b32 v{V_T0}, 3, v{V_LANE}")
        k(f"v_and_b32 v{V_T1}, 32, v{V_LANE}")
        k(f"v_lshl_add_u32 v{VA}, v{V_T1}, 25, v{V_T0}")
        k(f"v_and_b32 v{V_T0}, 31, v{V_LANE}")
        k(f"v_subrev_u32 v{V_T2}, 4, v{V_T0}")
        k(f"v_cmp_gt_u32 vcc, 20, v{V_T0}")
        k(f"v_cndmask_b32 v{V_T0}, v{V_T2}, v{V_T0}, vcc")
        k(f"v_add_u32 v{V_T0}, v{V_T0}, v{V_T1}")
        k(f"v_lshlrev_b32 v{VB}, 4, v{V_T0}")
        self.bias_tile(BC, "le")
        self.bias_tile(BW, "gt")
        k(f"s_mov_b32 s{S_M}, 0")
        k(f"s_mov_b32 s{S_M + 1}, -1")

        def areg(b, j, what):
            base = 126 * b + 14 * j
            return base + {"k0": 0, "k1": 4, "v0": 6, "v1": 10}[what]

        def loads(n):
            b = n & 1
            k(f"s_mul_i32 s{S_T0}, s{S_BLK + 8}, 1280")
            k(f"s_add_u32 s{S_T0}, s{S_T0}, {WS_BQK + 1280 * n}")
            k(f"buffer_load_dwordx4 {vr(Q[b], 4)}, v{V_L16}, {WS}, s{S_T0} offen sc1")
            k(f"buffer_load_dwordx2 {vr(Q[b] + 4, 2)}, v{VA}, {WS}, s{S_T0} offen offset:1024 sc1")
            for j in range(9):
                k(f"s_mul_i32 s{S_T0}, s{S_BLK + j}, 1280")
                k(f"s_add_u32 s{S_T0}, s{S_T0}, {WS_BQK + 3 * MB + 1280 * n}")
                k(f"buffer_load_dwordx4 {ar(areg(b, j, 'k0'), 4)}, v{V_L16}, {WS}, s{S_T0} offen sc1")
                k(f"buffer_load_dwordx2 {ar(areg(b, j, 'k1'), 2)}, v{VA}, {WS}, s{S_T0} offen offset:1024 sc1")
            for j in range(9):
                k(f"s_lshl_b32 s{S_T0}, s{S_BLK + j}, 11")
                k(f"s_add_u32 s{S_T0}, s{S_T0}, {WS_BV + 2048 * n}")
                k(f"buffer_load_dwordx4 {ar(areg(b, j, 'v0'), 4)}, v{VB}, {WS}, s{S_T0} offen sc1")
                k(f"buffer_load_dwordx4 {ar(areg(b, j, 'v1'), 4)}, v{VB}, {WS}, s{S_T0} offen offset:1024 sc1")

        k(f"s_mul_i32 s{S_OO}, s{S_SEG}, 40960")
        k(f"s_mul_i32 s{S_T0}, s{S_U3}, 5120")
        k(f"s_add_u32 s{S_OO}, s{S_OO}, s{S_T0}")
        k(f"s_add_u32 s{S_OO}, s{S_OO}, {WS_BO}")
        loads(0)
        for n in range(4):
            b = n & 1
            k(f"s_waitcnt vmcnt({1 if n else 0})")
            if n < 3:
                loads(n + 1)
            for j in range(9):
                c = vr(BW, 16) if j == 0 else vr(BC, 16) if j == 8 else "0"
                k(f"v_mfma_f32_32x32x16_bf16 {vr(S + 16 * j, 16)}, {ar(areg(b, j, 'k0'), 4)}, {vr(Q[b], 4)}, {c}")
                k(f"v_mfma_f32_32x32x8_bf16 {vr(S + 16 * j, 16)}, {ar(areg(b, j, 'k1'), 2)}, {vr(Q[b] + 4, 2)}, {vr(S + 16 * j, 16)}")
            full = k.label("full")
            for j in range(8):
                k(f"s_cmp_ge_u32 s{S_SEG}, {8 - j}")
                k(f"s_cbranch_scc1 {full}")
                for i in range(16):
                    k(f"v_mov_b32 v{S + 16 * j + i}, {NEG:#x}")
            k(f"{full}:")
            k(f"v_max_f32 v{V_T0}, v{S}, v{S + 1}")
            for i in range(2, 144, 2):
                k(f"v_max3_f32 v{V_T0}, v{V_T0}, v{S + i}, v{S + i + 1}")
            self.half_reduce("max", V_T0, V_T1)
            for j in range(9):
                D = S + 16 * j
                for i in range(16):
                    k(f"v_sub_f32 v{D + i}, v{D + i}, v{V_T0}")
                for i in range(16):
                    k(f"v_mul_f32 v{D + i}, s{S_C}, v{D + i}")
                for i in range(16):
                    k(f"v_exp_f32 v{D + i}, v{D + i}")
                self.pack_p(PK[j & 1], D)
                for u in range(2):
                    c = "0" if j == 0 and u == 0 else vr(O, 16)
                    k(f"v_mfma_f32_32x32x16_bf16 {vr(O, 16)}, {ar(areg(b, j, 'v%d' % u), 4)}, {vr(PK[j & 1] + 4 * u, 4)}, {c}")
            k(f"v_rcp_f32 v{V_T0}, v{O + 12}")
            for i in range(12):
                k(f"v_mul_f32 v{O + i}, v{O + i}, v{V_T0}")
            for i in range(4):
                k(f"v_cvt_pk_bf16_f32 v{OP + i}, v{O + 2 * i}, v{O + 2 * i + 1}")
            X = OP + 4 + 2 * (n >> 1)
            if n & 1 == 0:
                k(f"v_cvt_pk_bf16_f32 v{X}, v{O + 8}, v{O + 9}")
                k(f"v_cvt_pk_bf16_f32 v{X + 1}, v{O + 10}, v{O + 11}")
            else:
                k(f"s_mov_b64 exec, {sr(S_M, 2)}")
                k(f"v_cvt_pk_bf16_f32 v{X}, v{O + 8}, v{O + 9}")
                k(f"v_cvt_pk_bf16_f32 v{X + 1}, v{O + 10}, v{O + 11}")
                k("s_mov_b64 exec, -1")
            k(f"buffer_store_dwordx4 {vr(OP, 4)}, v{V_L16}, {WS}, s{S_OO} offen offset:{1024 * n} sc1")
        k(f"s_add_u32 s{S_OO}, s{S_OO}, 4096")
        k(f"buffer_store_dwordx4 {vr(OP + 4, 4)}, v{V_L16}, {WS}, s{S_OO} offen sc1")
        k(f"{done}:")

    def phase_ao(self):
        k = self.k
        k("; ---- token attention and output projection of the recurrent branch")
        self.srd(S_WT, 40, 4096 * 1280)
        k(f"s_mul_i32 s{S_WB}, s{S_J}, {256 * 1280}")
        k(f"s_mul_i32 s{S_T0}, s{S_W}, 320")
        k(f"s_add_u32 s{S_WB}, s{S_WB}, s{S_T0}")
        self.tr_addr("wide")
        self.src_rows(V_S0, 1280, "perm")
        self.load_weights([(V_S0, ks * 16 * 1280 + 64 * T, WREG + 4 * (T * 16 + ks)) for ks in range(16) for T in range(5)])
        ACC = 112
        VM, ID, VKM, VVM, VOW = 2, 6, 10, 11, 12
        Q, K, V, BC = 20, 52, 84, 176
        SX, SM, O, PK = 112, 128, 144, 100
        self.out_addr(V_O0)
        k(f"v_and_b32 v{V_T0}, 31, v{V_LANE}")
        k(f"v_and_b32 v{V_T1}, 32, v{V_LANE}")
        k(f"v_lshlrev_b32 v{V_T2}, 4, v{V_T0}")
        k(f"v_lshl_add_u32 v{V_T3}, v{V_T1}, 2, v{V_T2}")
        k(f"v_cmp_gt_u32 vcc, 8, v{V_T0}")
        k(f"v_mov_b32 v{VKM}, 0x40000000")
        k(f"v_cndmask_b32 v{VKM}, v{VKM}, v{V_T3}, vcc")
        k(f"v_lshrrev_b32 v{V_T1}, 2, v{V_T1}")
        k(f"v_add_u32 v{VVM}, v{V_T1}, v{V_T2}")
        k(f"s_lshl_b32 s{S_T0}, s{S_W}, 12")
        k(f"v_add_u32 v{VOW}, s{S_T0}, v{V_L16}")
        k(f"v_lshrrev_b32 v{V_T1}, 3, v{V_LANE}")
        k(f"v_xor_b32 v{V_T1}, v{V_T1}, v{V_LANE}")
        k(f"v_and_b32 v{V_T1}, 4, v{V_T1}")
        k(f"v_and_or_b32 v{V_T1}, v{V_LANE}, 16, v{V_T1}")
        k(f"v_bfe_u32 v{V_T2}, v{V_LANE}, 3, 1")
        k(f"v_bfe_u32 v{V_T3}, v{V_LANE}, 1, 1")
        k(f"v_lshl_add_u32 v{V_T2}, v{V_T2}, 1, v{V_T3}")
        k(f"v_add_u32 v{V_T1}, v{V_T1}, v{V_T2}")
        k(f"v_and_b32 v{V_T2}, 1, v{V_LANE}")
        k(f"v_lshlrev_b32 v{V_T2}, 4, v{V_T2}")
        k(f"v_mov_b32 v{V_T3}, 0x3f80")
        k(f"v_lshlrev_b32 v{V_T2}, v{V_T2}, v{V_T3}")
        for i in range(4):
            k(f"v_cmp_eq_u32 vcc, {i}, v{V_T1}")
            k(f"v_cndmask_b32 v{ID + i}, 0, v{V_T2}, vcc")
        k(f"s_lshr_b32 s{S_SEG}, s{S_WI}, 4")
        k(f"s_mov_b32 s{S_WANT}, 0")
        k(f"s_lshl_b32 s{S_FL}, s{S_J}, 7")
        k(f"s_add_u32 s{S_FL}, s{S_FL}, {FL_CHAIN}")
        self.poll(DBG, 4 * DBG_INIT, 192, mask=0xffff)
        self.mark(9)
        top = k.label("ao")
        k(f"{top}:")
        k(f"s_lshl_b32 s{S_T0}, s{S_SEG}, 4")
        k(f"s_add_u32 s{S_U1}, s{S_T0}, s{S_J}")
        k(f"s_lshl_b32 s{S_T0}, s{S_U1}, 1")
        k(f"s_lshr_b32 s{S_T1}, s{S_W}, 1")
        k(f"s_add_u32 s{S_U0}, s{S_T0}, s{S_T1}")
        k(f"s_lshl_b32 s{S_T0}, s{S_U0}, 13")
        k(f"s_add_u32 s{S_T0}, s{S_T0}, {WS_QX}")
        k(f"s_lshl_b32 s{S_T1}, s{S_U0}, 14")
        k(f"s_add_u32 s{S_T1}, s{S_T1}, {WS_KV}")
        for f in range(8):
            if f == 4:
                k(f"s_add_u32 s{S_T0}, s{S_T0}, 4096")
                k(f"s_add_u32 s{S_T1}, s{S_T1}, 4096")
            k(f"buffer_load_dwordx4 {vr(Q + 4 * f, 4)}, v{V_L16}, {WS}, s{S_T0} offen offset:{1024 * (f & 3)} sc1")
            k(f"buffer_load_dwordx4 {vr(K + 4 * f, 4)}, v{V_L16}, {WS}, s{S_T1} offen offset:{1024 * (f & 3)} sc1")
        k(f"s_and_b32 s{S_U2}, s{S_W}, 1")
        k(f"s_lshl_b32 s{S_T0}, s{S_U2}, 12")
        k(f"s_add_u32 s{S_T1}, s{S_T1}, s{S_T0}")
        k(f"s_add_u32 s{S_T1}, s{S_T1}, 4096")
        for f in range(4):
            k(f"buffer_load_dwordx4 {vr(V + 4 * f, 4)}, v{V_L16}, {WS}, s{S_T1} offen offset:{1024 * f} sc1")
        self.bias_tile(BC, "le")
        for f in range(8):
            k(f"s_waitcnt vmcnt({18 - 2 * f})")
            c = vr(BC, 16) if f == 0 else vr(SX, 16)
            k(f"v_mfma_f32_32x32x16_bf16 {vr(SX, 16)}, {vr(K + 4 * f, 4)}, {vr(Q + 4 * f, 4)}, {c}")
        k(f"s_add_u32 s{S_T2}, s{S_SEG}, 1")
        self.poll(WS, f"s{S_FL}", f"s{S_T2}", nd=4, sh=4)
        k(f"s_lshl_b32 s{S_T0}, s{S_U0}, 11")
        k(f"s_add_u32 s{S_T1}, s{S_T0}, {WS_VM}")
        k(f"s_add_u32 s{S_T0}, s{S_T0}, {WS_KM}")
        k(f"s_lshl_b32 s{S_T2}, s{S_U2}, 10")
        k(f"s_add_u32 s{S_T1}, s{S_T1}, s{S_T2}")
        for f in range(8):
            k(f"buffer_load_dwordx4 {vr(K + 4 * f, 4)}, v{VKM}, {WS}, s{S_T0} offen offset:{256 * f} sc1")
        for t in range(2):
            k(f"buffer_load_dwordx2 {vr(VM + 2 * t, 2)}, v{VVM}, {WS}, s{S_T1} offen offset:{512 * t} sc1")
        k(f"v_max_f32 v{V_T0}, v{SX}, v{SX + 1}")
        for i in range(2, 16, 2):
            k(f"v_max3_f32 v{V_T0}, v{V_T0}, v{SX + i}, v{SX + i + 1}")
        for f in range(8):
            k(f"s_waitcnt vmcnt({9 - f})")
            c = "0" if f == 0 else vr(SM, 16)
            k(f"v_mfma_f32_32x32x16_bf16 {vr(SM, 16)}, {vr(K + 4 * f, 4)}, {vr(Q + 4 * f, 4)}, {c}")
        k(f"v_max3_f32 v{V_T0}, v{V_T0}, v{SM}, v{SM + 1}")
        k(f"v_max3_f32 v{V_T0}, v{V_T0}, v{SM + 2}, v{SM + 3}")
        self.half_reduce("max", V_T0, V_T1)
        for i in range(20):
            k(f"v_sub_f32 v{SX + i}, v{SX + i}, v{V_T0}")
        for i in range(20):
            k(f"v_exp_f32 v{SX + i}, v{SX + i}")
        self.pack_p(PK, SX)
        k(f"v_cvt_pk_bf16_f32 v{PK + 8}, v{SM}, v{SM + 1}")
        k(f"v_cvt_pk_bf16_f32 v{PK + 9}, v{SM + 2}, v{SM + 3}")
        k("s_waitcnt vmcnt(0)")
        adds = [f"v_add_f32 v{V_T0}, v{SX}, v{SX + 1}"] + [f"v_add_f32 v{V_T0}, v{V_T0}, v{SX + i}" for i in range(2, 20)]
        for t in range(2):
            for u in range(3):
                if u < 2:
                    c = "0" if u == 0 else vr(O + 16 * t, 16)
                    k(f"v_mfma_f32_32x32x16_bf16 {vr(O + 16 * t, 16)}, {vr(V + 8 * t + 4 * u, 4)}, {vr(PK + 4 * u, 4)}, {c}")
                else:
                    k(f"v_mfma_f32_32x32x8_bf16 {vr(O + 16 * t, 16)}, {vr(VM + 2 * t, 2)}, {vr(PK + 8, 2)}, {vr(O + 16 * t, 16)}")
                for _ in range(5):
                    if adds: k(adds.pop(0))
        self.half_reduce("add", V_T0, V_T1)
        k(f"v_rcp_f32 v{V_T0}, v{V_T0}")
        for g in range(4):
            for i in range(8):
                k(f"v_mul_f32 v{O + 8 * g + i}, v{O + 8 * g + i}, v{V_T0}")
            for i in range(4):
                k(f"v_cvt_pk_bf16_f32 v{Q + 4 * g + i}, v{O + 8 * g + 2 * i}, v{O + 8 * g + 2 * i + 1}")
            k(f"ds_write_b128 v{VOW}, {vr(Q + 4 * g, 4)} offset:{1024 * g}")
        k("s_waitcnt lgkmcnt(0)")
        k("s_barrier")
        XF = K
        for ks in range(2):
            k(f"ds_read_b128 {vr(XF + 4 * ks, 4)}, v{V_L16} offset:{1024 * ks}")
        for ks in range(16):
            k(f"s_waitcnt lgkmcnt({min(1, 15 - ks)})")
            for T in range(5):
                c = "0" if ks == 0 else vr(ACC + 16 * T, 16)
                k(f"v_mfma_f32_32x32x16_bf16 {vr(ACC + 16 * T, 16)}, {ur(WREG + 4 * (T * 16 + ks), 4)}, {vr(XF + 4 * (ks % 3), 4)}, {c}")
                if T == 0 and ks + 2 < 16:
                    k(f"ds_read_b128 {vr(XF + 4 * ((ks + 2) % 3), 4)}, v{V_L16} offset:{1024 * (ks + 2)}")
        k(f"s_mul_i32 s{S_T0}, s{S_U1}, 40960")
        k(f"s_mul_i32 s{S_T1}, s{S_W}, 10240")
        k(f"s_add_u32 s{S_T0}, s{S_T0}, s{S_T1}")
        k(f"s_add_u32 s{S_T0}, s{S_T0}, {WS_PART}")
        for f in range(10):
            for i in range(4):
                k(f"v_cvt_pk_bf16_f32 v{Q + 4 * f + i}, v{ACC + 8 * f + 2 * i}, v{ACC + 8 * f + 2 * i + 1}")
            if f in (4, 8):
                k(f"s_add_u32 s{S_T0}, s{S_T0}, 4096")
            k(f"buffer_store_dwordx4 {vr(Q + 4 * f, 4)}, v{V_L16}, {WS}, s{S_T0} offen offset:{1024 * (f & 3)} sc1")
        self.arrive(WS, f"s{S_TEAM}")
        k(f"s_add_u32 s{S_WANT}, s{S_WANT}, 16")
        nored = k.label("ao_nored")
        self.poll(WS, f"s{S_TEAM}", f"s{S_WANT}")
        k(f"s_lshl_b32 s{S_T2}, s{S_W}, 4")
        k(f"s_add_u32 s{S_T2}, s{S_T2}, s{S_J}")
        k(f"s_cmp_ge_u32 s{S_T2}, 40")
        k(f"s_cbranch_scc1 {nored}")
        k(f"s_mul_i32 s{S_T0}, s{S_SEG}, {16 * 40960}")
        k(f"s_lshl_b32 s{S_T1}, s{S_T2}, 10")
        k(f"s_add_u32 s{S_T0}, s{S_T0}, s{S_T1}")
        k(f"s_add_u32 s{S_T0}, s{S_T0}, {WS_PART}")
        for p in range(16):
            k(f"buffer_load_dwordx4 {vr(Q + 4 * p, 4)}, v{V_L16}, {WS}, s{S_T0} offen sc1")
            k(f"s_add_u32 s{S_T0}, s{S_T0}, 40960")
        k(f"s_lshr_b32 s{S_T0}, s{S_T2}, 1")
        k(f"s_lshl_b32 s{S_T0}, s{S_T0}, 6")
        k(f"s_and_b32 s{S_T1}, s{S_T2}, 1")
        k(f"s_lshl_b32 s{S_T1}, s{S_T1}, 4")
        k(f"s_add_u32 s{S_T0}, s{S_T0}, s{S_T1}")
        k(f"s_mul_i32 s{S_T1}, s{S_SEG}, {32 * 2560}")
        k(f"s_add_u32 s{S_T0}, s{S_T0}, s{S_T1}")
        for p in range(16):
            k(f"s_waitcnt vmcnt({15 - p})")
            c = "0" if p == 0 else vr(ACC, 16)
            k(f"v_mfma_f32_32x32x16_bf16 {vr(ACC, 16)}, {vr(ID, 4)}, {vr(Q + 4 * p, 4)}, {c}")
        for i in range(4):
            k(f"v_cvt_pk_bf16_f32 v{PK + i}, v{ACC + 2 * i}, v{ACC + 2 * i + 1}")
        k(f"buffer_store_dwordx4 {vr(PK, 4)}, v{V_O0}, {OUT}, s{S_T0} offen")
        k(f"{nored}:")
        k(f"s_add_u32 s{S_SEG}, s{S_SEG}, 12")
        k(f"s_cmp_lt_u32 s{S_SEG}, 64")
        k(f"s_cbranch_scc1 {top}")

    def mark(self, i):
        if not self.timing:
            return
        k = self.k
        if i == 0:
            k(f"s_mov_b32 s{S_TA}, s78")
        else:
            k(f"s_memrealtime {sr(S_TA, 2)}")
            k("s_waitcnt lgkmcnt(0)")
        k(f"v_mov_b32 v{V_T0}, s{S_TA}")
        k(f"s_lshl_b32 s{S_T0}, s3, 6")
        k(f"s_add_u32 s{S_T0}, s{S_T0}, {WS_STAMP + 65536 + 4 * i}")
        k("s_mov_b64 exec, 1")
        k(f"buffer_store_dword v{V_T0}, v{V_L16}, {WS}, s{S_T0} offen")
        k("s_mov_b64 exec, -1")
        k("s_waitcnt vmcnt(0)")

    def program(self, ch, claim):
        k = self.k
        self.base_consts()
        self.phase_aqkv(ch, claim)
        self.mark(2)
        self.phase_bqkv()
        self.mark(4)
        self.arrive(DBG, 4 * DBG_BAR1)
        self.poll(DBG, 4 * DBG_BAR1, 192)
        self.mark(5)
        self.phase_battn()
        self.mark(6)
        self.arrive(DBG, 4 * DBG_BAR2)
        self.phase_bout_load()
        self.poll(DBG, 4 * DBG_BAR2, 192)
        self.mark(7)
        self.phase_bout()
        self.mark(8)
        self.phase_ao()
        self.mark(10)
```

```python
import sys
from asmlib import *
from layout import *
import chain as C
from chain import Chain, S_A, S_H, S_W, S_STEP, S_SPIN, S_T0, S_T1, S_T2, S_T3, S_TA, WS, OOB
import worker as W
from worker import Worker, S_WI, S_DBG, S_OUT, DBG

NAME = "concat_heads__memory_aug_recurrent_mem_tr__sliding_block__prompt"
SPIN = 1 << 16
S_ROLE = 3


def build(name=NAME + "_kernel", stamps=None, fakexcc=False, timing=False, **opt):
    copt = dict(x4=1, d1=32, d2=256, natt=1, nset=2)
    copt.update(opt)
    k = Asm()
    ch = Chain(k, stamps=stamps, **copt)
    wk = Worker(k, **opt)
    k(f"{name}:")
    k("s_cmp_ge_u32 s2, 256")
    k("s_cbranch_scc1 L_exit")
    if timing:
        k("s_memrealtime s[78:79]")
    k("s_load_dwordx2 s[4:5], s[0:1], 96")
    k(f"s_load_dwordx2 {sr(S_DBG, 2)}, s[0:1], 88")
    k("v_lshrrev_b32 v1, 6, v0")
    k(f"v_readfirstlane_b32 s{S_W}, v1")
    k("v_and_b32 v0, 63, v0")
    k(f"s_mov_b32 s{S_SPIN}, {SPIN}")
    k(f"s_getreg_b32 s{S_T2}, hwreg(HW_REG_XCC_ID)")
    if fakexcc:
        k(f"s_lshr_b32 s{S_T2}, s{S_T2}, 1")
        k(f"s_lshl_b32 s{S_T2}, s{S_T2}, 1")
    k(f"s_and_b32 s{S_T2}, s{S_T2}, 7")
    k("s_waitcnt lgkmcnt(0)")
    k(f"s_mov_b32 s6, {WS_BYTES}")
    k("s_mov_b32 s7, 0x20000")
    k(f"s_mov_b32 s{S_DBG + 2}, 256")
    k(f"s_mov_b32 s{S_DBG + 3}, 0x20000")
    k(f"s_lshl_b32 s{S_ROLE}, s{S_T2}, 5")
    k(f"s_lshr_b32 s{S_T0}, s2, 3")
    if opt.get("fakeid"):
        k(f"s_and_b32 s{S_T0}, s{S_T0}, 28")
    k(f"s_add_u32 s{S_ROLE}, s{S_ROLE}, s{S_T0}")

    def registered(v, dst):
        k(f"v_readlane_b32 s{dst}, v{v}, {DBG_OVF}")
        for x in range(8):
            k(f"v_readlane_b32 s{S_T0}, v{v}, {dbg_word(x)}")
            k(f"s_bcnt1_i32_b32 s{S_T0}, s{S_T0}")
            k(f"s_add_u32 s{dst}, s{dst}, s{S_T0}")

    def claim(va, vb, lds):
        done, wait, tr, got, ovf, lp, sel, have = (k.label(x) for x in ("cdone", "cwait", "ctry", "cgot", "covf", "clp", "csel", "chave"))
        k("s_bitcmp1_b32 s2, 31")
        k(f"s_cbranch_scc1 {done}")
        k(f"v_mov_b32 v{vb}, 0")
        k(f"s_cmp_lg_u32 s{S_W}, 0")
        k(f"s_cbranch_scc1 {wait}")
        k(f"s_lshr_b32 s{S_T2}, s{S_ROLE}, 5")
        k(f"s_lshr_b32 s{S_T0}, {(1 << XA) | (1 << XB)}, s{S_T2}")
        k(f"s_and_b32 s{S_T0}, s{S_T0}, 1")
        k(f"s_lshl_b32 s{S_T0}, s{S_T0}, 5")
        k(f"s_add_u32 s{S_T2}, s{S_T2}, s{S_T0}")
        k(f"s_lshl_b32 s{S_T2}, s{S_T2}, 2")
        k(f"s_and_b32 s{S_T1}, s{S_ROLE}, 31")
        k(f"{tr}:")
        k(f"s_lshl_b32 s{S_T0}, 1, s{S_T1}")
        k(f"v_mov_b32 v{va}, s{S_T0}")
        k("s_mov_b64 exec, 1")
        k(f"buffer_atomic_or v{va}, v{vb}, {DBG}, s{S_T2} offen sc0")
        k("s_waitcnt vmcnt(0)")
        k(f"v_readfirstlane_b32 s{S_T3}, v{va}")
        k("s_mov_b64 exec, -1")
        k(f"s_and_b32 s{S_T0}, s{S_T0}, s{S_T3}")
        k(f"s_cbranch_scc0 {got}")
        k(f"s_cmp_eq_u32 s{S_T3}, -1")
        k(f"s_cbranch_scc1 {ovf}")
        k(f"s_mul_i32 s{S_T1}, s2, 37")
        k(f"s_lshr_b32 s{S_T1}, s{S_T1}, 3")
        k(f"s_and_b32 s{S_T1}, s{S_T1}, 31")
        k(f"s_mov_b32 vcc_lo, s{S_T3}")
        k(f"s_mov_b32 vcc_hi, s{S_T3}")
        k(f"s_lshr_b64 vcc, vcc, s{S_T1}")
        k(f"s_ff0_i32_b32 s{S_T0}, vcc_lo")
        k(f"s_add_u32 s{S_T1}, s{S_T1}, s{S_T0}")
        k(f"s_and_b32 s{S_T1}, s{S_T1}, 31")
        k(f"s_branch {tr}")
        k(f"{got}:")
        k(f"s_and_b32 s{S_T0}, s{S_ROLE}, 0xe0")
        k(f"s_add_u32 s{S_T1}, s{S_T1}, s{S_T0}")
        k(f"s_branch {have}")
        k(f"{ovf}:")
        k(f"v_mov_b32 v{va}, 1")
        k("s_mov_b64 exec, 1")
        k(f"buffer_atomic_add v{va}, v{vb}, {DBG}, {4 * DBG_OVF} offen sc0")
        k("s_waitcnt vmcnt(0)")
        k(f"v_readfirstlane_b32 s{S_T2}, v{va}")
        k("s_mov_b64 exec, -1")
        k(f"v_lshlrev_b32 v{vb}, 2, v0")
        k(f"{lp}:")
        wk.spin()
        k(f"buffer_load_dword v{va}, v{vb}, {DBG}, 0 offen sc1")
        k("s_waitcnt vmcnt(0)")
        registered(va, S_T1)
        k(f"s_cmp_lt_u32 s{S_T1}, 256")
        k(f"s_cbranch_scc1 {lp}")
        for x in range(8):
            k(f"v_readlane_b32 s{S_T3}, v{va}, {dbg_word(x)}")
            k(f"s_mov_b32 s{S_T1}, {32 * x}")
            k(f"s_bcnt0_i32_b32 s{S_T0}, s{S_T3}")
            k(f"s_cmp_lt_u32 s{S_T2}, s{S_T0}")
            k(f"s_cbranch_scc1 {sel}")
            k(f"s_sub_u32 s{S_T2}, s{S_T2}, s{S_T0}")
        k("s_branch L_abort")
        k(f"{sel}:")
        k(f"s_ff0_i32_b32 s{S_T0}, s{S_T3}")
        k(f"s_bitset1_b32 s{S_T3}, s{S_T0}")
        k(f"s_sub_u32 s{S_T2}, s{S_T2}, 1")
        k(f"s_cbranch_scc0 {sel}")
        k(f"s_add_u32 s{S_T1}, s{S_T1}, s{S_T0}")
        k(f"{have}:")
        k(f"v_mov_b32 v{va}, s{S_T1}")
        k(f"v_mov_b32 v{vb}, {lds}")
        k(f"ds_write_b32 v{vb}, v{va}")
        k("s_waitcnt lgkmcnt(0)")
        k(f"{wait}:")
        k("s_barrier")
        k(f"v_mov_b32 v{vb}, {lds}")
        k(f"ds_read_b32 v{va}, v{vb}")
        k("s_waitcnt lgkmcnt(0)")
        k(f"v_readfirstlane_b32 s{S_T0}, v{va}")
        k("s_bitset1_b32 s2, 31")
        k(f"s_and_b32 s{S_T0}, s{S_T0}, 255")
        k(f"s_cmp_eq_u32 s{S_T0}, s{S_ROLE}")
        k(f"s_cbranch_scc1 {done}")
        k(f"s_mov_b32 s{S_ROLE}, s{S_T0}")
        k("s_waitcnt vmcnt(0)")
        k("s_barrier")
        k("s_branch L_dispatch")
        k(f"{done}:")

    k("L_dispatch:")
    k(f"s_lshr_b32 s{S_T0}, s{S_ROLE}, 5")
    k(f"s_cmp_eq_u32 s{S_T0}, {XA}")
    k("s_cbranch_scc1 L_chain")
    k(f"s_cmp_eq_u32 s{S_T0}, {XB}")
    k("s_cbranch_scc1 L_chain")
    k("s_branch L_worker")
    k("L_exit:")
    k("s_endpgm")

    k("L_chain:")
    k(f"s_cmp_eq_u32 s{S_T0}, {XB}")
    k(f"s_cselect_b32 s{S_A}, 1, 0")
    k(f"s_and_b32 s{S_H}, s{S_ROLE}, 31")
    k("s_load_dwordx2 s[88:89], s[0:1], 16")
    k("s_load_dwordx2 s[92:93], s[0:1], 24")
    k("s_load_dwordx2 s[96:97], s[0:1], 32")
    k("s_load_dwordx2 s[80:81], s[0:1], 40")
    k(f"s_mov_b32 s{S_STEP}, 0")
    if stamps:
        k(f"s_mov_b32 s{C.S_STAMP + 4}, 0")
        k(f"s_mov_b64 {sr(C.S_STAMP, 2)}, 0")
        k(f"s_mov_b64 {sr(C.S_STAMP + 2, 2)}, 0")
    k("s_waitcnt lgkmcnt(0)")
    for s in (88, 92, 96, 80):
        k(f"s_mov_b32 s{s + 2}, {640 * 8192}")
        k(f"s_mov_b32 s{s + 3}, 0x20000")
    if timing:
        k("s_memrealtime s[100:101]")
    ch.load_weights(88, 92, 96, 80, lambda: claim(60, 61, C.LDS_JUNK))
    if timing:
        k("s_memrealtime s[98:99]")
    k("s_load_dwordx2 s[88:89], s[0:1], 8")
    k("s_waitcnt lgkmcnt(0)")
    k("s_mov_b32 s90, 10240")
    k("s_mov_b32 s91, 0x20000")
    ch.mem0_piece(88)
    k(f"v_lshrrev_b32 v15, 2, v{C.V_L16}")
    k("L_hs:")
    ch.spin()
    k(f"buffer_load_dword v62, v15, {DBG}, 0 offen sc1")
    k("s_waitcnt vmcnt(0)")
    k(f"v_readlane_b32 s77, v62, {DBG_INIT}")
    k(f"s_and_b32 s{S_T0}, s77, 0xffff")
    k(f"s_cmp_lt_u32 s{S_T0}, 192")
    k("s_cbranch_scc1 L_hs")
    registered(62, S_T1)
    k(f"s_cmp_lt_u32 s{S_T1}, 256")
    k("s_cbranch_scc1 L_hs")
    k("s_lshr_b32 s77, s77, 16")
    k(f"s_and_b32 s77, s77, 1")
    if opt.get("pol"):
        k("s_xor_b32 s77, s77, 1")
    ch.remote_offsets(77)
    k(f"v_readlane_b32 s{S_T0}, v62, {dbg_word(XA)}")
    k(f"v_readlane_b32 s{S_T1}, v62, {dbg_word(XB)}")
    k(f"s_cmp_eq_u32 s{S_A}, 0")
    k(f"s_cselect_b32 s77, s{S_T0}, s{S_T1}")
    k(f"s_cmp_eq_u32 s{C.S_RED}, 0")
    k("s_cbranch_scc1 L_np")
    ch.piece_store(80, C.S_MLW, " sc1")
    ch.piece_store(80, C.S_MRW, " sc1")
    k("L_np:")
    k(f"s_mov_b32 s{S_T3}, 0")
    ch.ready_poll(60, 61)
    ch.late_consts()
    ch.pre_step()
    if timing:
        k("s_memrealtime s[80:81]")
        k(f"s_mov_b32 s{S_SPIN}, {SPIN}")
    k("s_waitcnt lgkmcnt(0)")
    k("s_cmp_lg_u32 s77, -1")
    k("s_cbranch_scc1 L_safe")
    k(f"s_cmp_lg_u32 s{S_W}, 3")
    ch.loop("f", "")
    k("s_branch L_cend")
    k("L_safe:")
    k(f"s_cmp_lg_u32 s{S_W}, 3")
    ch.names = []
    ch.loop("s", " sc1")
    k("L_cend:")
    if timing:
        ch.write_stamps()
        k("s_memrealtime s[94:95]")
        k("s_waitcnt lgkmcnt(0)")
        for i, s in enumerate((78, 98, 80, 94, 100)):
            k(f"v_mov_b32 v{64 + i}, s{s}")
        k(f"s_lshl_b32 s{S_T0}, s{S_ROLE}, 6")
        k(f"s_add_u32 s{S_T0}, s{S_T0}, {WS_STAMP + 65536}")
        k("s_mov_b64 exec, 1")
        k(f"buffer_store_dwordx4 v[64:67], v{C.V_L16}, {WS}, s{S_T0} offen")
        k(f"buffer_store_dword v68, v{C.V_L16}, {WS}, s{S_T0} offen offset:16")
    k("L_abort:")
    k("s_endpgm")
    k("L_cabort:")
    if timing:
        k(f"s_add_u32 s{C.S_STAMP + 4}, s{S_STEP}, 0xdead0000")
        ch.write_stamps()
    k("s_endpgm")

    k("L_worker:")
    k(f"s_cmp_eq_u32 s{S_T0}, 6")
    k(f"s_cselect_b32 s{S_T1}, 32, 0")
    k(f"s_sub_u32 s{S_WI}, s{S_ROLE}, s{S_T1}")
    wk.timing = timing
    wk.program(ch, lambda: claim(W.V_T0, W.V_T1, 163836))
    k("s_endpgm")
    k.fix_hazards(verbose="-v" in sys.argv)
    if "-e" in sys.argv:
        i0 = [i for i, it in enumerate(k.items) if it == ("l", "L_step_f")][0]
        i1 = [i for i, it in enumerate(k.items) if it == ("l", "L_nr_f")][0]
        t, marks = estimate(k.items[i0:i1], verbose="-vv" in sys.argv)
        print(t, marks)
    if opt.get("at") is not None:
        i0 = [i for i, it in enumerate(k.items) if it == ("t", "; @" + stamps[0])][0] + 1
        n, i = 0, i0
        while n < opt["at"]:
            i += 1
            if k.items[i][0] == "i":
                n += 1
        build.last = k.items[i][1].text
        k.items.insert(i + 1, ("i", Ins(f"s_memtime {sr(C.S_STAMP + 2, 2)}")))
    head = f"""; Recurrent-memory transformer block and sliding-window attention block in one persistent launch.
; @launch grid=(256,1,1) block=(256,1,1) lds=163840
.amdgcn_target "amdgcn-amd-amdhsa--gfx950"
.text
.globl {name}
.p2align 8
.type {name},@function
"""
    tail = f""".section .rodata,"a"
.p2align 6
.amdhsa_kernel {name}
  .amdhsa_next_free_vgpr 512
  .amdhsa_next_free_sgpr 102
  .amdhsa_accum_offset 256
  .amdhsa_group_segment_fixed_size 0
  .amdhsa_kernarg_size 104
  .amdhsa_user_sgpr_count 2
  .amdhsa_user_sgpr_kernarg_segment_ptr 1
  .amdhsa_system_sgpr_workgroup_id_x 1
  .amdhsa_float_denorm_mode_32 3
.end_amdhsa_kernel
"""
    return head + k.text() + tail, ch.names


if __name__ == "__main__":
    txt, _ = build()
    open(f"cdna_kernels/{NAME}.s", "w").write(txt)
    print(len(txt), "bytes")
```

```python
import math
import struct
from asmlib import vr, ur, sr
from layout import *

N_LDSU = 17
LDS_WAVE_W = N_LDSU * 2048
LDS_MEM = 0
LDS_KX = LDS_MEM + 10240
LDS_QK = LDS_KX + 8192
LDS_JUNK = LDS_QK + 8 * 544
LDS_W = 24576
assert LDS_JUNK + 256 <= LDS_W and LDS_W + 4 * LDS_WAVE_W <= 163840
OOB = 0x80000000

S_WS = 4
S_A, S_H, S_W, S_STEP, S_SPIN = 8, 9, 10, 11, 12
S_PUB, S_INB = 13, 15
S_MLR, S_MLW, S_MRR, S_MRW = 16, 17, 18, 19
S_KX, S_VX, S_KVM = 20, 21, 22
S_RED = 23
S_C = 24
S_SENT = 25
S_B0 = 26
S_SEL = 28
S_T0, S_T1, S_T2, S_T3 = 36, 37, 38, 39
S_TA = 40
S_MLB = 42
S_DLT = 43
S_STAMP = 44
S_MEMM = 51
S_RS0, S_RS1, S_RS2 = 52, 53, 54
S_W1280 = 55
S_W4096 = 56
S_ONES = 57
S_LIM = 58
S_3F80 = 59
S_REDM = 60
S_RHO = 61
S_LIM2 = 62
S_KVT = 63
S_CNT = 64
S_CL, S_CR = 65, 66
S_SENT2 = 68
S_KVX = 70
S_W2M = 72
S_KVS, S_READY, S_PRG = 74, 75, 76
S_ONES2 = 82
S_KXM, S_KXO = 50, 14
S_RM0, S_RO = 53, 57
S_OOB = 84
S_PB = 92

V_L16, V_IDX, V_QW, V_QR, V_KR, V_OW, V_PUB, V_RST = 0, 1, 2, 3, 4, 5, 6, 7
V_KXS, V_VXS, V_KVM, V_VW, V_WL, V_MW = 8, 9, 10, 11, 12, 13
V_UP = V_L16
V_SM = 13
ACC = {"q0": 16, "q1": 20, "k0": 24, "k1": 28, "v0": 32, "v1": 36}
F = [40, 44, 48]
U = [52, 60]
VX = 68
MATS = ["q0", "q1", "k0", "k1", "v0", "v1"]
WS = sr(S_WS, 4)
ROR8 = "row_ror:8 row_mask:0xf bank_mask:0xf"


def unit_index(u):
    if u[0] == "o":
        return 60 + 2 * u[1] + u[2]
    return MATS.index(u[0]) * 10 + u[1]


ALL_UNITS = [(m, c) for m in MATS for c in range(10)] + [("o", t, mo) for t in range(5) for mo in range(2)]
LDS_UNITS = [(m, c) for c in range(4) for m in ("v0", "v1")] + [("o", t, mo) for t in (0, 1, 3, 4) for mo in range(2)] + [("v0", 4)]
REG_UNITS = [u for u in ALL_UNITS if u not in LDS_UNITS]
assert len(LDS_UNITS) == N_LDSU and len(REG_UNITS) == 53
REG_OF = {u: 88 + 8 * i for i, u in enumerate(REG_UNITS)}
LDS_OF = {u: 2048 * i for i, u in enumerate(LDS_UNITS)}


def fbits(x):
    return struct.unpack("<I", struct.pack("<f", x))[0]


T2REG = [44, 46, 48, 78, 90, 98, 100]


class Chain:
    def __init__(self, k, stamps=None, nsteps=64, **opt):
        self.opt = opt
        self.k = k
        self.stamps = stamps
        self.nsteps = nsteps
        self.names = []

    def stamp(self, name):
        self.names.append(name)
        self.k(f"; @{name}")
        t2 = self.opt.get("t2")
        if t2 and name in t2:
            self.k(f"s_memtime {sr(T2REG[t2.index(name)], 2)}")
        if not self.stamps or name not in self.stamps:
            return
        self.k(f"s_memtime {sr(S_STAMP + 2 * self.stamps.index(name), 2)}")

    def smf(self, acc, a, b):
        self.k(f"v_smfmac_f32_16x16x64_bf16 {vr(acc, 4)}, {vr(a, 4)}, {ur(b, 8)}, v{V_IDX}")

    def upart(self, dst, u, hi):
        self.k(f"ds_read_b128 {vr(dst + 4 * hi, 4)}, v{V_WL} offset:{LDS_OF[u] + 1024 * hi}")

    def lds_unit(self, dst, u):
        self.upart(dst, u, 0)
        self.upart(dst, u, 1)

    def frag(self, dst, c):
        self.k(f"ds_read_b128 {vr(dst, 4)}, v{V_UP} offset:{1024 * c}")

    def kxpart(self, dst, tau, m):
        off = LDS_KX - LDS_MEM + (tau >> 1) * 4096 + (tau & 1) * 1024 + 2048 * m
        self.k(f"ds_read_b128 {vr(dst + 4 * m, 4)}, v{V_UP} offset:{off}")

    def sample(self, remote, r):
        self.k(f"buffer_load_dwordx2 {vr(r, 2)}, v{V_SM}, {WS}, s{S_MRR if remote else S_MLW} offen sc1")

    def mem_dma(self, remote):
        k = self.k
        so = S_MRR if remote else S_MLW
        k(f"s_mov_b32 m0, {LDS_MEM + 5120 * remote}")
        k(f"s_add_u32 s{S_T0}, s{so}, 4096")
        for c in range(4):
            k(f"buffer_load_dwordx4 v{V_L16}, {WS}, s{so} offen offset:{1024 * c} sc1 lds")
        k(f"s_mov_b32 m0, {LDS_MEM + 5120 * remote + 4096}")
        k(f"buffer_load_dwordx4 v{V_L16}, {WS}, s{S_T0} offen sc1 lds")

    def cmp_nan(self, r):
        self.k(f"v_cmp_{'f' if self.opt.get('free') else 'u'}_f32 vcc, v{r}, v{r + 1}")

    def kx_all(self):
        k = self.k
        for tau in range(4):
            k(f"s_mov_b32 m0, {LDS_KX + (tau >> 1) * 4096 + (tau & 1) * 1024 - 128 * tau}")
            k(f"buffer_load_dwordx4 v{V_KXS}, {WS}, s{S_KX} offen offset:{128 * tau} sc1 lds")
            k(f"buffer_load_dwordx4 v{V_KXS}, {WS}, s{S_KX} offen offset:{128 * tau + 2048} sc1 lds")

    def chk5(self, r4, r1, t):
        c = "f" if self.opt.get("free") else "u"
        return [f"v_fma_f32 v{t}, v{r4}, v{r4 + 1}, v{r4 + 2}",
                f"v_add_f32 v{t}, v{t}, v{r4 + 3}",
                f"v_cmp_{c}_f32 vcc, v{t}, v{r1}"]

    def exact_check(self, regs):
        k = self.k
        k(f"s_mov_b64 {sr(S_TA, 2)}, 0")
        for r in regs:
            k(f"v_cmp_eq_u32 vcc, s{S_SENT}, v{r}")
            k(f"s_or_b64 {sr(S_TA, 2)}, {sr(S_TA, 2)}, vcc")

    def spin(self):
        self.k(f"s_sub_u32 s{S_SPIN}, s{S_SPIN}, 1")
        self.k(f"s_cbranch_scc1 L_cabort")

    def consts(self):
        k = self.k
        T = 20
        g, c, t0, t1, t2 = T, T + 1, T + 2, T + 3, T + 4
        k(f"v_lshrrev_b32 v{g}, 4, v0")
        k(f"v_and_b32 v{c}, 15, v0")
        k(f"v_and_b32 v{t0}, 2, v{c}")
        k(f"v_cmp_ne_u32 vcc, 0, v{t0}")
        k(f"v_mov_b32 v{t1}, 0x44444444")
        k(f"v_mov_b32 v{t2}, 0xeeeeeeee")
        k(f"v_cndmask_b32 v{V_IDX}, v{t1}, v{t2}, vcc")
        k(f"s_lshl_b32 s{S_T0}, s{S_W}, 6")
        k(f"s_add_u32 s{S_T0}, s{S_T0}, {LDS_QK}")
        k(f"v_mul_u32_u24 v{t0}, 1088, v{g}")
        k(f"v_lshl_add_u32 v{t0}, v{c}, 2, v{t0}")
        k(f"v_add_u32 v{V_QW}, s{S_T0}, v{t0}")
        k(f"s_lshl_b32 s{S_T0}, s{S_W}, 9")
        k(f"s_add_u32 s{S_T0}, s{S_T0}, {LDS_MEM + 5120}")
        k(f"v_lshlrev_b32 v{t0}, 2, v{g}")
        k(f"v_lshl_add_u32 v{t0}, v{c}, 4, v{t0}")
        k(f"v_add_u32 v{V_VW}, s{S_T0}, v{t0}")
        k(f"v_and_b32 v{t0}, 7, v{c}")
        k(f"v_mul_u32_u24 v{t0}, 544, v{t0}")
        k(f"v_lshlrev_b32 v{t1}, 1, v{c}")
        k(f"v_xor_b32 v{t1}, v{t1}, v{c}")
        k(f"v_and_b32 v{t1}, 8, v{t1}")
        k(f"v_lshl_add_u32 v{t0}, v{t1}, 4, v{t0}")
        k(f"v_lshl_add_u32 v{t0}, v{g}, 4, v{t0}")
        k(f"v_add_u32 v{V_QR}, {LDS_QK}, v{t0}")
        k(f"v_lshrrev_b32 v{t2}, 2, v{c}")
        k(f"v_lshlrev_b32 v{t2}, 1, v{t2}")
        k(f"v_and_b32 v{t1}, 1, v{c}")
        k(f"v_or_b32 v{t2}, v{t2}, v{t1}")
        k(f"v_and_b32 v{t1}, 2, v{c}")
        k(f"v_mul_u32_u24 v{t0}, 544, v{t2}")
        k(f"v_lshl_add_u32 v{t0}, v{t1}, 6, v{t0}")
        k(f"v_lshl_add_u32 v{t0}, v{g}, 4, v{t0}")
        k(f"v_add_u32 v{V_KR}, {LDS_QK + 256}, v{t0}")
        k(f"v_lshlrev_b32 v{t0}, 11, v{t1}")
        k(f"v_lshl_add_u32 v{t0}, v{g}, 9, v{t0}")
        k(f"v_lshl_add_u32 v{V_KXS}, v{t2}, 4, v{t0}")
        k(f"s_and_b32 s{S_T0}, s{S_W}, 1")
        k(f"s_lshl_b32 s{S_T0}, s{S_T0}, 6")
        k(f"v_add_u32 v{t2}, s{S_T0}, v0")
        k(f"v_and_b32 v{t0}, 7, v{t2}")
        k(f"v_mul_u32_u24 v{t0}, 544, v{t0}")
        k(f"v_lshrrev_b32 v{t1}, 3, v{t2}")
        k(f"v_lshl_add_u32 v{t0}, v{t1}, 4, v{t0}")
        k(f"v_add_u32 v{t0}, {LDS_QK + 256}, v{t0}")
        k(f"v_lshlrev_b32 v{t1}, 4, v{t2}")
        k(f"v_add_u32 v{t1}, {LDS_MEM + 5120}, v{t1}")
        k(f"s_cmp_eq_u32 s{S_A}, 0")
        k(f"s_cselect_b64 vcc, -1, 0")
        k(f"v_cndmask_b32 v{V_KVM}, v{t1}, v{t0}, vcc")
        k(f"s_lshr_b32 s{S_T0}, s{S_W}, 1")
        k(f"s_lshl_b32 s{S_T0}, s{S_T0}, 10")
        k(f"s_and_b32 s{S_T1}, s{S_W}, 1")
        k(f"s_lshl_b32 s{S_T1}, s{S_T1}, 5")
        k(f"s_add_u32 s{S_T0}, s{S_T0}, s{S_T1}")
        k(f"s_add_u32 s{S_T0}, s{S_T0}, {LDS_MEM}")
        k(f"v_and_b32 v{t0}, 6, v{c}")
        k(f"v_lshlrev_b32 v{t0}, 5, v{t0}")
        k(f"v_and_b32 v{t1}, 1, v{c}")
        k(f"v_lshl_add_u32 v{t0}, v{t1}, 4, v{t0}")
        k(f"v_lshl_add_u32 v{t0}, v{g}, 8, v{t0}")
        k(f"v_add_u32 v{V_OW}, s{S_T0}, v{t0}")
        k(f"v_lshlrev_b32 v{t0}, 11, v{g}")
        k(f"v_lshl_add_u32 v{V_PUB}, v{c}, 2, v{t0}")
        k(f"v_and_b32 v{t0}, 2, v{c}")
        k(f"v_lshlrev_b32 v{t0}, 4, v{t0}")
        k(f"v_lshl_add_u32 v{t0}, v{g}, 4, v{t0}")
        k(f"v_and_b32 v{t1}, 1, v{c}")
        k(f"v_lshl_add_u32 v{t0}, v{t1}, 3, v{t0}")
        k(f"v_and_b32 v{t1}, {0x2d if self.opt.get('x4') else 0x2c}, v0")
        k(f"v_cmp_eq_u32 vcc, 0, v{t1}")
        k(f"v_mov_b32 v{t1}, 0x40000000")
        k(f"v_cndmask_b32 v{V_RST}, v{t1}, v{t0}, vcc")
        k(f"v_and_b32 v{t0}, 1, v{g}")
        k(f"v_lshlrev_b32 v{t0}, 10, v{t0}")
        k(f"v_and_b32 v{t1}, 2, v{g}")
        k(f"v_lshl_add_u32 v{t0}, v{t1}, 8, v{t0}")
        k(f"v_lshl_add_u32 v{t0}, v{c}, 4, v{t0}")
        k(f"s_lshl_b32 s{S_T0}, s{S_W}, 11")
        k(f"s_add_u32 s{S_T0}, s{S_T0}, 8192")
        k(f"v_add_u32 v{V_VXS}, s{S_T0}, v{t0}")
        k(f"s_lshl_b32 s{S_W4096}, s{S_W}, 12")
        k(f"s_add_u32 s{S_W4096}, s{S_W4096}, {32 * 16384}")
        for t in range(4):
            m = 0x11111111 << t
            k(f"s_mov_b32 s{S_SEL + 2 * t}, {m:#x}")
            k(f"s_mov_b32 s{S_SEL + 2 * t + 1}, {m:#x}")
        k(f"v_lshlrev_b32 v{V_L16}, 4, v0")
        k(f"s_mul_i32 s{S_T0}, s{S_W}, {LDS_WAVE_W}")
        k(f"s_add_u32 s{S_T0}, s{S_T0}, {LDS_W}")
        k(f"v_add_u32 v{V_WL}, s{S_T0}, v{V_L16}")
        k(f"s_mov_b32 s{S_B0}, 0xf00ff00f")
        k(f"s_mov_b32 s{S_B0 + 1}, 0xf00ff00f")
        k(f"s_mov_b32 s{S_C}, {fbits(math.log2(math.e) / math.sqrt(128.0)):#x}")
        k(f"s_mov_b32 s{S_SENT}, {SENT:#x}")
        k(f"s_mov_b32 s{S_SENT2}, {SENT:#x}")
        k(f"s_mov_b32 s{S_SENT2 + 1}, {SENT:#x}")
        k(f"s_mov_b32 s{S_3F80}, 0x3f80")
        lim = int(self.opt.get('lim', 40))
        k(f"s_mov_b32 s{S_LIM}, {(127 - lim) << 23:#x}")
        k(f"s_mov_b32 s{S_LIM2}, {(2 * lim) << 23:#x}")
        k(f"s_lshl_b32 s{S_T2}, s{S_H}, 1")
        k(f"s_add_u32 s{S_T2}, s{S_T2}, s{S_W}")
        k(f"s_add_u32 s{S_T2}, s{S_T2}, 16")
        k(f"s_cmp_lt_u32 s{S_W}, 2")
        k(f"s_cselect_b32 s{S_RHO}, s{S_T2}, s{S_H}")
        k(f"s_cselect_b32 s{S_RED}, 1, 0")
        k(f"s_lshl_b32 s{S_T0}, s{S_W}, 5")
        k(f"s_add_u32 s{S_T0}, s{S_T0}, s{S_H}")
        k(f"s_cmp_lt_u32 s{S_T0}, 80")
        k(f"s_cselect_b32 s{S_RED}, 1, 0")
        k(f"s_cselect_b32 s{S_REDM}, 0, {OOB:#x}")
        k(f"s_mul_i32 s{S_T0}, s{S_A}, {2 * INBOX_SLOT}")
        k(f"s_add_u32 s{S_T0}, s{S_T0}, {WS_INBOX}")
        k(f"s_lshl_b32 s{S_T1}, s{S_RHO}, 11")
        k(f"s_add_u32 s{S_INB}, s{S_T0}, s{S_T1}")
        k(f"s_mov_b32 s{S_RS0}, {OOB:#x}")
        k(f"s_mov_b32 s{S_KVT}, {OOB:#x}")
        k(f"s_mov_b32 s{S_CNT}, 0")
        k(f"s_mov_b32 s{S_CL}, 0")
        k(f"s_mov_b32 s{S_CR}, 0")
        k(f"s_mov_b32 s{S_RS2}, {OOB:#x}")
        k(f"s_lshl_b32 s{S_T1}, s{S_H}, 6")
        k(f"s_add_u32 s{S_T0}, s{S_T0}, s{S_T1}")
        k(f"s_lshl_b32 s{S_T1}, s{S_W}, 13")
        k(f"s_add_u32 s{S_PUB}, s{S_T0}, s{S_T1}")
        k(f"s_lshl_b32 s{S_T0}, s{S_RHO}, 6")
        k(f"v_add_u32 v{V_RST}, s{S_T0}, v{V_RST}")
        k(f"s_lshl_b32 s{S_T0}, s{S_A}, 15")
        k(f"s_add_u32 s{S_MLB}, s{S_T0}, {WS_MEML}")
        k(f"s_lshl_b32 s{S_T0}, s{S_H}, 14")
        k(f"s_add_u32 s{S_KX}, s{S_T0}, {WS_KV}")
        k(f"s_lshl_b32 s{S_T0}, s{S_H}, 11")
        k(f"s_lshl_b32 s{S_T1}, s{S_W}, 10")
        k(f"s_add_u32 s{S_T0}, s{S_T0}, s{S_T1}")
        k(f"s_mul_i32 s{S_T1}, s{S_A}, {WS_VM - WS_KM}")
        k(f"s_add_u32 s{S_T0}, s{S_T0}, s{S_T1}")
        k(f"s_add_u32 s{S_KVM}, s{S_T0}, {WS_KM - 65536}")
        k(f"s_cmp_lt_u32 s{S_W}, 2")
        k(f"s_cselect_b32 s{S_KVM}, s{S_KVM}, {OOB:#x}")
        k(f"s_cselect_b32 s{S_KVS}, 65536, 0")
        k(f"s_cselect_b64 {sr(S_KVX, 2)}, -1, 1")
        k(f"s_lshr_b32 s{S_T0}, s{S_H}, 1")
        k(f"s_lshl_b32 s{S_T0}, s{S_T0}, 7")
        k(f"s_and_b32 s{S_T1}, s{S_H}, 1")
        k(f"s_lshl_b32 s{S_T1}, s{S_T1}, 1")
        k(f"s_add_u32 s{S_T1}, s{S_T1}, s{S_A}")
        k(f"s_lshl_b32 s{S_T1}, s{S_T1}, 4")
        k(f"s_add_u32 s{S_T0}, s{S_T0}, s{S_T1}")
        k(f"s_add_u32 s{S_T0}, s{S_T0}, {FL_CHAIN}")
        k(f"s_cmp_eq_u32 s{S_W}, 2")
        k(f"s_cselect_b32 s{S_KVM}, s{S_T0}, s{S_KVM}")
        k(f"s_cselect_b64 {sr(S_W2M, 2)}, 1, 0")
        k(f"s_lshl_b32 s{S_T0}, s{S_H}, 7")
        k(f"s_add_u32 s{S_PRG}, s{S_T0}, {FL_PROG}")
        k(f"s_mov_b32 s{S_READY}, 0")
        k(f"s_mul_i32 s{S_W1280}, s{S_W}, 1280")
        k(f"v_add_u32 v{V_MW}, s{S_W1280}, v{V_L16}")
        k(f"s_add_u32 s{S_MEMM}, s{S_W1280}, {LDS_MEM + 5120}")
        k(f"s_mov_b32 s{S_DLT}, {INBOX_SLOT}")
        k(f"s_mov_b32 s{S_MLW}, s{S_MLB}")
        k(f"s_add_u32 s{S_MLR}, s{S_MLB}, s{S_W1280}")

    def late_consts(self):
        k = self.k
        k(f"s_lshr_b32 s{S_T0}, s{S_W}, 1")
        k(f"s_lshl_b32 s{S_T0}, s{S_T0}, 12")
        k(f"s_and_b32 s{S_T1}, s{S_W}, 1")
        k(f"s_lshl_b32 s{S_T1}, s{S_T1}, 10")
        k(f"s_add_u32 s{S_T0}, s{S_T0}, s{S_T1}")
        k(f"s_add_u32 s{S_KXM}, s{S_T0}, {LDS_KX}")
        k(f"s_lshl_b32 s{S_T0}, s{S_W}, 7")
        k(f"s_add_u32 s{S_KXO}, s{S_KX}, s{S_T0}")
        k(f"s_lshl_b32 s{S_RO}, s{S_W}, 11")
        k(f"s_add_u32 s{S_RM0}, s{S_RO}, {LDS_MEM + 5120}")
        k(f"v_mov_b64 v[48:49], 0")
        k(f"ds_write2_b64 v48, v[48:49], v[48:49] offset0:0 offset1:1" if False else f"ds_write_b64 v48, v[48:49] offset:{LDS_JUNK + 128}")
        k(f"ds_write_b64 v48, v[48:49] offset:{LDS_JUNK + 136}")
        k(f"v_min_u32 v{V_SM}, {39 * 16}, v{V_L16}")
        k(f"v_lshl_add_u32 v{V_SM}, v{V_SM}, 3, 60")
        k(f"s_mov_b32 s{S_ONES2}, 0x3f803f80")
        k(f"s_mov_b32 s{S_ONES2 + 1}, 0x3f803f80")
        for t in range(5):
            k(f"s_add_u32 s{S_PB + t}, s{S_PUB}, {32768 * t}")
        if self.opt.get("t2"):
            k(f"s_lshl_b32 s{S_T0}, s{S_A}, 5")
            k(f"s_add_u32 s{S_T0}, s{S_T0}, s{S_H}")
            k(f"s_lshl_b32 s{S_T0}, s{S_T0}, 2")
            k(f"s_add_u32 s{S_T0}, s{S_T0}, s{S_W}")
            k(f"s_lshl_b32 s{S_T0}, s{S_T0}, 12")
            k(f"s_add_u32 s97, s{S_T0}, {WS_STAMP + 2 * MB - 64}")

    def remote_offsets(self, pol_sgpr):
        k = self.k
        k(f"s_lshl_b32 s{S_T0}, s{pol_sgpr}, 13")
        k(f"s_add_u32 s{S_T0}, s{S_T0}, {WS_MEMR}")
        k(f"s_lshl_b32 s{S_T1}, s{S_A}, 14")
        k(f"s_add_u32 s{S_MRW}, s{S_T0}, s{S_T1}")
        k(f"s_xor_b32 s{S_MRR}, s{S_MRW}, 0x4000")

    def probe_polarity(self, dst):
        k = self.k
        k("v_mov_b32 v40, 0")
        k("s_mov_b64 exec, 1")
        for pol in range(2):
            k(f"s_mov_b32 s{S_T2 + pol}, -1")
        for rep in range(4):
            for pol in range(2):
                k(f"s_mov_b32 s{S_T0}, {WS_MEMR + 8192 * pol + 7936}")
                k(f"s_memtime {sr(S_TA, 2)}")
                k("s_waitcnt lgkmcnt(0)")
                k(f"s_mov_b32 s{S_T1}, s{S_TA}")
                k(f"buffer_store_dword v40, v40, {WS}, s{S_T0} offen sc1")
                k("s_waitcnt vmcnt(0)")
                k(f"s_memtime {sr(S_TA, 2)}")
                k("s_waitcnt lgkmcnt(0)")
                k(f"s_sub_u32 s{S_T1}, s{S_TA}, s{S_T1}")
                k(f"s_min_u32 s{S_T2 + pol}, s{S_T2 + pol}, s{S_T1}")
        k("s_mov_b64 exec, -1")
        k(f"s_cmp_lt_u32 s{S_T3}, s{S_T2}")
        k(f"s_cselect_b32 s{dst}, 1, 0")

    def piece_store(self, lo, so, st):
        if self.opt.get("x4"):
            self.k(f"buffer_store_dwordx4 {vr(lo, 4)}, v{V_RST}, {WS}, s{so} offen{st}")
        else:
            self.k(f"buffer_store_dwordx2 {vr(lo, 2)}, v{V_RST}, {WS}, s{so} offen{st}")

    def widen(self, lo):
        if self.opt.get("x4"):
            self.k(f"v_mov_b32_dpp v{lo + 2}, v{lo} quad_perm:[1,1,3,3] row_mask:0xf bank_mask:0xf")
            self.k(f"v_mov_b32_dpp v{lo + 3}, v{lo + 1} quad_perm:[1,1,3,3] row_mask:0xf bank_mask:0xf")

    def init_sentinels(self, st):
        k = self.k
        skip = k.label("nosent")
        k(f"s_cmp_eq_u32 s{S_RED}, 0")
        k(f"s_cbranch_scc1 {skip}")
        for i in range(4):
            k(f"v_mov_b32 v{40 + i}, s{S_SENT}")
        for slot in range(2):
            k(f"s_add_u32 s{S_T0}, s{S_INB}, {slot * INBOX_SLOT}")
            for ld in range(2):
                k(f"buffer_store_dwordx4 v[40:43], v{V_L16}, {WS}, s{S_T0} offen offset:{1024 * ld}{st}")
        for slot in range(4):
            k(f"s_add_u32 s{S_T0}, s{S_MLB}, {slot * 8192}")
            self.piece_store(40, S_T0, st)
        k(f"v_lshlrev_b32 v44, 11, v{V_L16}")
        k(f"s_lshl_b32 s{S_T0}, s{S_A}, 14")
        k(f"s_add_u32 s{S_T0}, s{S_T0}, {WS_MEMR}")
        k(f"s_lshl_b32 s{S_T1}, s{S_RHO}, 6")
        k(f"s_add_u32 s{S_T0}, s{S_T0}, s{S_T1}")
        for pol in range(2):
            for q in range(4):
                k(f"buffer_store_dwordx4 v[40:43], v44, {WS}, s{S_T0} offen offset:{16 * q} sc1")
            k(f"s_add_u32 s{S_T0}, s{S_T0}, 8192")
        k(f"{skip}:")

    def pre_step(self, kvm=True):
        k = self.k
        self.lds_unit(U[0], ("v0", 0))
        self.lds_unit(U[1], ("v1", 0))
        for r in range(16, 40, 2):
            k(f"v_mov_b64 {vr(r, 2)}, 0")

    def delay(self, n):
        while n > 0:
            m = min(n // 4, 16)
            if m <= 0:
                break
            self.k(f"s_nop {m - 1}")
            n -= 4 * m

    def seldom(self, back, regs):
        k = self.k
        go = k.label("go")
        self.spin()
        k(f"s_and_b32 s{S_T0}, s{S_SPIN}, 7")
        k(f"s_cbranch_scc1 {go}")
        self.exact_check(regs)
        k(f"s_cbranch_scc0 {back}")
        k(f"{go}:")

    def loop(self, tag, st):
        k = self.k
        smf = self.smf
        opt = self.opt
        top = f"L_step_{tag}"
        outl = []
        cmpu = "f" if opt.get("free") else "u"

        def check_branch(c):
            b = k.label("bk")
            if not opt.get("nobr"):
                k(f"s_cbranch_vccnz L_rt{c}_{tag}")
            k(f"{b}:")
            outl.append((c, b))

        def M(m, c):
            u = (m, c)
            smf(ACC[m], F[c % 3], U[int(m[1])] if u in LDS_OF else REG_OF[u])

        natt = opt.get("natt", 2)
        SR = [82, 68, 70][:natt]
        t2 = 1 if opt.get("t2") else 0

        def masked(mask, line):
            return [f"s_mov_b64 exec, {mask}", line, "s_mov_b64 exec, -1"]

        def prefetch_setup():
            known = k.label("known")
            k(f"s_add_u32 s{S_T2}, s{S_KX}, s{S_W4096}")
            k(f"s_add_u32 s{S_T3}, s{S_STEP}, 1")
            k(f"v_lshlrev_b32 v14, 3, v{V_L16}")
            k(f"s_sub_u32 s{S_T0}, s{S_PRG}, s{S_T2}")
            k(f"s_sub_u32 s{S_T0}, s{S_T0}, 128")
            k("s_mov_b32 exec_lo, 0")
            k(f"v_add_u32 v14, s{S_T0}, v15")
            k("s_mov_b32 exec_lo, -1")
            k(f"s_cmp_eq_u32 s{S_READY}, 128")
            k(f"s_cbranch_scc1 {known}")
            k("v_mov_b32 v48, 0")
            k(f"ds_read_b128 v[48:51], v48 offset:{LDS_JUNK + 128}")
            k("s_waitcnt lgkmcnt(0)")
            for i in range(3):
                k(f"v_mad_u32_u24 v{48 + i}, v{48 + i}, 3, {i}")
            k("v_min3_u32 v48, v48, v49, v50")
            k(f"v_readfirstlane_b32 s{S_T0}, v48")
            k(f"s_max_u32 s{S_READY}, s{S_READY}, s{S_T0}")
            k(f"s_cmp_ge_u32 s{S_READY}, 64")
            k(f"s_cselect_b32 s{S_READY}, 128, s{S_READY}")
            k(f"{known}:")

        k(f"{top}:")
        k("s_barrier")
        self.stamp("top")
        k(f"s_cbranch_scc1 L_t012_{tag}")
        self.delay(opt.get("d2", 0))
        for r in SR:
            self.sample(False, r)
            self.mem_dma(False)
        prefetch_setup()
        self.stamp("iss")
        k(f"s_waitcnt vmcnt({6 * natt - 1})")
        self.stamp("smp")
        self.cmp_nan(82)
        k(f"s_cbranch_vccnz L_rl_{tag}")
        k(f"L_bl_{tag}:")
        self.sample(True, 80)
        k("s_barrier")
        k(f"s_waitcnt vmcnt({6 * natt - 5})")
        k(f"L_tb_{tag}:")
        self.stamp("dma")
        k("s_barrier")
        self.frag(F[0], 0)
        self.frag(F[1], 1)
        k(f"L_go_{tag}:")
        k(f"s_mov_b32 m0, s{S_KXM}")
        k("s_waitcnt lgkmcnt(1)")
        self.stamp("c0")
        vxl = lambda n: k(f"buffer_load_dwordx4 {vr(VX + 4 * n, 4)}, v{V_VXS}, {WS}, s{S_KX} offen offset:{256 * n} sc1")
        for c in range(5):
            nxt0 = ("v0", c + 1) in LDS_OF
            nxt1 = ("v1", c + 1) in LDS_OF
            M("v0", c)
            if nxt0:
                self.upart(U[0], ("v0", c + 1), 0)
            if c == 4:
                k(f"s_cbranch_vccnz L_rr_{tag}")
                k(f"L_br_{tag}:")
                k("s_barrier")
                self.frag(F[2], 5)
            M("q0", c)
            if nxt0:
                self.upart(U[0], ("v0", c + 1), 1)
            if c == 4:
                self.frag(F[0], 6)
                k(f"s_cmp_ge_u32 s{S_T3}, s{S_READY}")
            M("q1", c)
            if c < 3:
                self.frag(F[(c + 2) % 3], c + 2)
                k("s_waitcnt lgkmcnt(3)")
            elif c == 3:
                k("s_waitcnt lgkmcnt(2)")
            else:
                k(f"s_cbranch_scc1 L_rdy_{tag}")
                k(f"L_brdy_{tag}:")
            M("v1", c)
            if nxt1:
                self.upart(U[1], ("v1", c + 1), 0)
            elif c == 3:
                vxl(1)
            else:
                k(f"s_mov_b32 m0, {LDS_JUNK}")
            M("k0", c)
            if nxt1:
                self.upart(U[1], ("v1", c + 1), 1)
            elif c == 3:
                k("s_waitcnt lgkmcnt(0)")
            else:
                k("s_mov_b32 exec_hi, 15")
                k(f"buffer_load_dword v14, {WS}, s{S_T2} offen sc1 lds")
                k("s_mov_b32 exec_hi, -1")
            M("k1", c)
            if c < 3:
                k("s_waitcnt lgkmcnt(3)")
                if c < 2:
                    k(f"buffer_load_dwordx4 v{V_KXS}, {WS}, s{S_KXO} offen offset:{2048 * c} sc1 lds")
                else:
                    vxl(0)
            elif c == 3:
                self.stamp("L3")
                k(f"s_waitcnt vmcnt(4)")
                self.stamp("rem")
                self.cmp_nan(80)
            else:
                k("s_waitcnt lgkmcnt(1)")
        self.stamp("L")
        def svc(lines):
            skip = k.label("svc")
            k(f"s_cbranch_scc1 {skip}")
            for x in lines: k(x)
            k(f"{skip}:")

        rs = lambda off: [f"buffer_store_dwordx4 v[84:87], v{V_L16}, {WS}, s{S_RS0} offen offset:{off}{st}"]
        for c in range(5, 10):
            M("q0", c)
            if c < 8:
                self.frag(F[(c + 2) % 3], c + 2)
            elif c == 8:
                self.frag(F[1], 5)
            else:
                k("s_nop 2")
            if c == 6:
                k("s_waitcnt vmcnt(3)")
            if c == 8:
                k("s_waitcnt vmcnt(1)")
            M("q1", c)
            if c == 6:
                k("s_barrier")
            elif c == 7:
                self.kxpart(U[1], 1, 1)
                k(f"s_cmp_eq_u32 s{S_W}, 3")
            elif c == 8:
                if not opt.get("nokvm"):
                    svc(masked(sr(S_KVX, 2), f"buffer_store_dwordx4 v[76:79], v{V_L16}, {WS}, s{S_KVT} offen sc1"))
                k(f"s_cmp_eq_u32 s{S_RED}, 0")
            elif c == 9:
                if opt.get("nors"):
                    k("s_nop 2")
                else:
                    svc(rs(0))
            M("k0", c)
            if c == 9:
                k("s_nop 1")
                k("v_add_f32 v16, v16, v18")
            M("k1", c)
            if 6 <= c < 9:
                self.kxpart(U[(c - 6) >> 1], (c - 6) >> 1, (c - 6) & 1)
            if c < 9:
                k(f"s_waitcnt lgkmcnt({[1, 2, 4, 4][c - 5]})")
        self.stamp("R")
        VC = [9, 8, 5, 6, 7]
        VF = [F[0], F[2], F[1], F[0], F[2]]

        def V(i):
            m, c = ("v0", "v1")[i & 1], i >> 1
            smf(ACC[m], VF[c], REG_OF[(m, VC[c])])

        k("s_nop 1")
        k("v_add_f32 v17, v17, v19")
        k("v_add_f32 v20, v20, v22")
        k("v_add_f32 v21, v21, v23")
        k("v_cvt_pk_bf16_f32 v82, v16, v20")
        k("v_cvt_pk_bf16_f32 v83, v17, v21")
        V(0)
        k(f"ds_write2_b32 v{V_QW}, v82, v83 offset0:0 offset1:136")
        k(f"v_cmp_{'tru' if opt.get('forcebad') else cmpu}_f32 vcc, v16, v17")
        V(1)
        self.frag(F[0], 6)
        k("v_add_f32 v24, v24, v26")
        V(2)
        k(f"s_cbranch_vccnz L_bad_{tag}")
        k(f"L_bbad_{tag}:")
        V(3)
        if not opt.get("nors"):
            svc(rs(1024))
        self.frag(F[2], 7)
        k("s_waitcnt lgkmcnt(2)")
        V(4)
        k("s_barrier")
        k(f"ds_read_b128 v[76:79], v{V_QR}")
        k("v_add_f32 v25, v25, v27")
        V(5)
        k(f"ds_read_b128 v[80:83], v{V_QR} offset:64")
        k("s_waitcnt lgkmcnt(2)")
        V(6)
        self.kxpart(16, 2, 0)
        k("v_add_f32 v28, v28, v30")
        V(7)
        if not opt.get("noring"):
            svc([f"buffer_store_dwordx4 v[84:87], v{V_RST}, {WS}, s{S_RS2} offen{st}"])
        k("v_add_f32 v29, v29, v31")
        V(8)
        self.kxpart(16, 2, 1)
        k("v_cvt_pk_bf16_f32 v14, v24, v28")
        V(9)
        k("s_waitcnt lgkmcnt(2)")
        k("v_cvt_pk_bf16_f32 v15, v25, v29")
        self.stamp("V")
        KT = [U[0], U[1], 16, 24, F[0]]

        def xs(t, m):
            c = "0" if m == 0 else vr(KT[t], 4)
            k(f"v_mfma_f32_16x16x32_bf16 {vr(KT[t], 4)}, {vr(KT[t] + 4 * m, 4)}, {vr(76 + 4 * m, 4)}, {c}")

        def sa(t, hi):
            d = KT[t]
            if hi == 0:
                k(f"v_add_f32_dpp v{84 + t}, v{d + 2}, v{d} row_ror:8 row_mask:0xf bank_mask:0x9")
            else:
                k(f"v_add_f32_dpp v{84 + t}, v{d + 1}, v{d + 3} row_ror:8 row_mask:0xf bank_mask:0x6")

        def se(t):
            k(f"v_exp_f32 v{84 + t}, v{84 + t}")

        def pv():
            return [
                "v_mfma_f32_16x16x32_bf16 v[44:47], v[48:51], v[60:63], 0",
                f"v_mfma_f32_16x16x32_bf16 v[32:35], {vr(VX, 4)}, v[60:63], 0",
                f"v_mfma_f32_16x16x32_bf16 v[36:39], {vr(VX + 4, 4)}, v[60:63], 0",
                "v_mfma_f32_16x16x16_bf16 v[44:47], v[48:49], v[80:81], v[44:47]",
                "v_mfma_f32_16x16x16_bf16 v[32:35], v[14:15], v[80:81], v[32:35]",
                "v_mfma_f32_16x16x16_bf16 v[36:39], v[14:15], v[82:83], v[36:39]",
            ]

        WU = [(52, ("o", 0, 0)), (16, ("o", 0, 1)), (24, ("o", 1, 0))]

        def wu(i):
            self.upart(WU[i >> 1][0], WU[i >> 1][1], i & 1)

        P = pv()
        xs(0, 0)
        k(f"ds_write2_b32 v{V_QW}, v14, v15 offset0:64 offset1:200")
        xs(0, 1)
        self.kxpart(24, 3, 0)
        k(f"v_mov_b64 v[48:49], {sr(S_ONES2, 2)}")
        xs(1, 0)
        self.kxpart(24, 3, 1)
        k(f"v_mov_b64 v[50:51], {sr(S_ONES2, 2)}")
        xs(1, 1)
        k("s_waitcnt lgkmcnt(3)")
        k("v_add_f32 v64, v32, v34")
        sa(0, 0)
        xs(2, 0)
        k("v_add_f32 v65, v33, v35")
        sa(0, 1)
        xs(2, 1)
        k("s_waitcnt lgkmcnt(0)")
        k("s_barrier")
        k(f"ds_read_b128 {vr(F[0], 4)}, v{V_KR}")
        xs(3, 0)
        k(f"ds_read_b128 {vr(F[1], 4)}, v{V_KR} offset:64")
        sa(1, 0)
        xs(3, 1)
        self.stamp("S2")
        se(0)
        sa(1, 1)
        sa(2, 0)
        k("v_add_f32 v66, v36, v38")
        se(1)
        sa(2, 1)
        k("v_add_f32 v67, v37, v39")
        se(2)
        k("s_waitcnt lgkmcnt(0)")
        xs(4, 0)
        sa(3, 0)
        k("v_cvt_pk_bf16_f32 v60, v84, v85")
        xs(4, 1)
        self.stamp("S")
        sa(3, 1)
        k(f"v_mov_b32_dpp v62, v60 {ROR8}")
        se(3)
        k("v_cvt_pk_bf16_f32 v14, v64, v65")
        k("v_cvt_pk_bf16_f32 v61, v86, v87")
        k("v_cvt_pk_bf16_f32 v15, v66, v67")
        k("v_mov_b32 v81, 0")
        k(f"v_mov_b32_dpp v63, v61 {ROR8}")
        k(f"v_add_f32_dpp v64, v42, v40 {ROR8}")
        k(f"v_add_f32_dpp v65, v43, v41 {ROR8}")
        k(P[0])
        k(f"v_mul_f32 v64, s{S_C}, v64")
        k(f"v_mul_f32 v65, s{S_C}, v65")
        k(P[1])
        k("v_exp_f32 v64, v64")
        k(P[2])
        k("v_exp_f32 v65, v65")
        k("v_mov_b32 v82, 0")
        k("v_cvt_pk_bf16_f32 v80, v64, v65")
        k("v_cvt_pk_bf16_f32 v83, v64, v65")
        k("v_mov_b64 v[64:65], 0")
        k(P[3])
        wu(0)
        wu(1)
        k(P[4])
        wu(2)
        wu(3)
        k(P[5])
        wu(4)
        wu(5)
        self.stamp("PV")
        k("v_rcp_f32 v45, v44")
        k(f"v_subrev_u32 v44, s{S_LIM}, v44")
        k(f"v_cmp_{'f' if opt.get('free') else 'le'}_u32 vcc, s{S_LIM2}, v44")
        for i in range(4):
            k(f"v_mul_f32 v{32 + i}, v{32 + i}, v45")
        k("v_cvt_pk_bf16_f32 v84, v32, v33")
        k("v_cvt_pk_bf16_f32 v85, v34, v35")
        for i in range(4, 8):
            k(f"v_mul_f32 v{32 + i}, v{32 + i}, v45")
        k("v_cvt_pk_bf16_f32 v86, v36, v37")
        k("v_cvt_pk_bf16_f32 v87, v38, v39")
        self.stamp("ow")
        k(f"s_mov_b64 exec, {sr(S_B0, 2)}")
        k(f"ds_write_b128 v{V_OW}, v[84:87]")
        k(f"s_mov_b64 exec, -1")
        k(f"s_cbranch_vccnz L_max_{tag}")
        k(f"L_bmax2_{tag}:")
        OA = [32, 40, 36, 44, 48]
        O0, O1 = 76, 80
        upre = opt.get("upre", 1)
        k("v_mfma_f32_32x32x8_bf16 v[32:47], v[64:65], v[64:65], 0")
        if upre:
            self.lds_unit(68, ("o", 3, 0))
        k("v_mfma_f32_16x16x16_bf16 v[48:51], v[64:65], v[64:65], 0")
        if upre:
            self.lds_unit(60, ("o", 1, 1))
        k(f"s_cmp_eq_u32 s{S_STEP}, {self.nsteps - 1}")
        k(f"s_waitcnt lgkmcnt({4 if upre else 0})")
        self.stamp("owd")
        k("s_barrier")
        self.frag(O0, 0)
        self.frag(O1, 1)
        k(f"s_cbranch_scc1 L_done_{tag}")
        if not upre:
            self.lds_unit(68, ("o", 3, 0))
            self.lds_unit(60, ("o", 1, 1))
        self.stamp("ox")

        def oa(t, j):
            k(f"v_add_f32 v{OA[t] + j}, v{OA[t] + j}, v{OA[t] + 2 + j}")

        def oc(t):
            k(f"v_cvt_pk_bf16_f32 v{OA[t]}, v{OA[t]}, v{OA[t] + 1}")

        def os_(t):
            k(f"buffer_store_dword v{OA[t]}, v{V_PUB}, {WS}, s{S_PB + t} offen{st}")

        k(f"s_waitcnt lgkmcnt({1 if upre else 5})")
        smf(OA[0], O0, 52)
        self.upart(52, ("o", 3, 1), 0)
        k(f"s_waitcnt lgkmcnt({1 if upre else 5})")
        smf(OA[0], O1, 16)
        self.upart(52, ("o", 3, 1), 1)
        self.upart(16, ("o", 4, 0), 0)
        smf(OA[1], O0, 24)
        self.upart(16, ("o", 4, 0), 1)
        k("s_waitcnt lgkmcnt(4)")
        smf(OA[1], O1, 60)
        self.upart(24, ("o", 4, 1), 0)
        self.upart(24, ("o", 4, 1), 1)
        oa(0, 0)
        smf(OA[2], O0, REG_OF[("o", 2, 0)])
        k(f"s_cmp_eq_u32 s{S_RED}, 0")
        oa(0, 1)
        oc(0)
        smf(OA[2], O1, REG_OF[("o", 2, 1)])
        os_(0)
        oa(1, 0)
        smf(OA[3], O0, 68)
        k("s_waitcnt lgkmcnt(4)")
        oa(1, 1)
        oc(1)
        smf(OA[3], O1, 52)
        os_(1)
        k("s_waitcnt lgkmcnt(0)")
        oa(2, 0)
        smf(OA[4], O0, 16)
        k("s_nop 1")
        oa(2, 1)
        oc(2)
        smf(OA[4], O1, 24)
        os_(2)
        oa(3, 0)
        oa(3, 1)
        oc(3)
        k("s_nop 1")
        os_(3)
        k("s_nop 0")
        oa(4, 0)
        oa(4, 1)
        oc(4)
        os_(4)
        self.stamp("O")
        nored = k.label("nored")

        SET = [(40, 44), (68, 72), (76, 84)][:opt.get("nset", 3)]
        ns = len(SET)

        def gather(n):
            k(f"buffer_load_dwordx4 {vr(SET[n][0], 4)}, v{V_L16}, {WS}, s{S_INB} offen sc1")
            k(f"buffer_load_dwordx4 {vr(SET[n][1], 4)}, v{V_L16}, {WS}, s{S_INB} offen offset:1024 sc1")

        def book():
            k(f"ds_write2_b32 v{V_VW}, v14, v15 offset0:0 offset1:64")
            k(f"s_add_u32 s{S_STEP}, s{S_STEP}, 1")
            k(f"s_or_b32 s{S_RS2}, s{S_MLW}, s{S_REDM}")
            k(f"s_mov_b32 s{S_RS0}, s{S_INB}")
            k(f"s_and_b32 s{S_T1}, s{S_STEP}, 3")
            k(f"s_lshl_b32 s{S_T1}, s{S_T1}, 13")
            k(f"s_add_u32 s{S_MLW}, s{S_MLB}, s{S_T1}")
            k(f"s_add_u32 s{S_MRW}, s{S_MRW}, 32768")
            k(f"s_add_u32 s{S_MRR}, s{S_MRR}, 32768")
            k(f"s_add_u32 s{S_KVM}, s{S_KVM}, s{S_KVS}")
            k(f"s_mov_b32 s{S_KVT}, s{S_KVM}")
            k(f"s_add_u32 s{S_KX}, s{S_KX}, {32 * 16384}")
            k(f"s_add_u32 s{S_KXO}, s{S_KXO}, {32 * 16384}")
            for t in range(5):
                k(f"s_add_u32 s{S_PB + t}, s{S_PB + t}, s{S_DLT}")
            k(f"v_lshrrev_b32 v15, 2, v{V_L16}")

        def attempt(n, fail):
            a, b = SET[n]
            k(f"s_waitcnt vmcnt({2 * ns - 1})")
            k(f"v_mfma_f32_16x16x32_bf16 v[80:83], v[48:51], {vr(a, 4)}, 0")
            k(f"v_fma_f32 v14, v{a}, v{a + 1}, v{a + 2}")
            k(f"s_waitcnt vmcnt({2 * ns - 2})")
            k(f"v_mfma_f32_16x16x32_bf16 v[80:83], v[48:51], {vr(b, 4)}, v[80:83]")
            k(f"v_fma_f32 v14, v{a + 3}, v{b}, v14")
            k(f"v_fma_f32 v14, v{b + 1}, v{b + 2}, v14")
            k(f"v_cmp_{cmpu}_f32 vcc, v14, v{b + 3}")
            k("s_nop 3")
            k(f"s_cbranch_vccnz {fail}")

        k(f"s_cbranch_scc1 L_nr_{tag}")
        book()
        self.delay(opt.get("d1", 0))
        gather(0)
        self.stamp("g0")
        k(f"v_and_b32 v14, 64, v{V_L16}")
        k(f"v_lshrrev_b32 v14, 2, v14")
        k(f"v_lshlrev_b32 v14, v14, s{S_3F80}")
        for t in range(4):
            k(f"v_cndmask_b32 v{48 + t}, 0, v14, {sr(S_SEL + 2 * t, 2)}")
        self.delay(opt.get("d1b", 0))
        gather(1)
        self.stamp("g1")
        for r in range(16, 40, 2):
            k(f"v_mov_b64 {vr(r, 2)}, 0")
        if ns > 2:
            self.delay(opt.get("d1c", 0))
            gather(2)
        self.lds_unit(U[0], ("v0", 0))
        self.lds_unit(U[1], ("v1", 0))
        self.stamp("gi")
        k(f"L_red0_{tag}:")
        attempt(0, f"L_rred0_{tag}")
        k(f"L_bred_{tag}:")
        self.stamp("got")
        for i in range(4):
            k(f"v_add_f32_dpp v{80 + i}, v{80 + i}, v{80 + i} row_ror:4 row_mask:0xf bank_mask:0xf")
        for i in range(4):
            k(f"v_add_f32_dpp v{80 + i}, v{80 + i}, v{80 + i} {ROR8}")
        k("v_cvt_pk_bf16_f32 v80, v80, v81")
        k("v_cvt_pk_bf16_f32 v81, v82, v83")
        self.widen(80)
        self.piece_store(80, S_MLW, st)
        self.piece_store(80, S_MRW, " sc1")
        self.stamp("red")
        k(f"{nored}:")
        k(f"s_add_u32 s{S_INB}, s{S_INB}, s{S_DLT}")
        k(f"s_sub_u32 s{S_DLT}, 0, s{S_DLT}")
        self.stamp("end")
        if self.stamps:
            self.dump_stamps(tag)
        k("s_waitcnt lgkmcnt(0)")
        if opt.get("t2"):
            for i in range(len(opt["t2"])):
                k(f"v_writelane_b32 v49, s{T2REG[i]}, {i}")
            k(f"v_writelane_b32 v49, s{S_CNT}, 7")
            k(f"v_writelane_b32 v49, s{S_CL}, 8")
            k(f"s_add_u32 s97, s97, 64")
            k("s_mov_b64 exec, 0xffff")
            k(f"buffer_store_dword v49, v15, {WS}, s97 offen")
            k("s_mov_b64 exec, -1")
        k(f"s_cmp_lg_u32 s{S_W}, 3")
        k(f"s_branch {top}")

        k(f"L_nr_{tag}:")
        book()
        self.pre_step()
        if opt.get("trace"):
            k("s_memtime s[88:89]")
            k("s_memrealtime s[90:91]")
            k(f"s_lshl_b32 s{S_T0}, s{S_A}, 5")
            k(f"s_add_u32 s{S_T0}, s{S_T0}, s{S_H}")
            k(f"s_lshl_b32 s{S_T0}, s{S_T0}, 6")
            k(f"s_add_u32 s{S_T0}, s{S_T0}, s{S_STEP}")
            k(f"s_lshl_b32 s{S_T0}, s{S_T0}, 3")
            k(f"s_add_u32 s{S_T0}, s{S_T0}, {WS_STAMP + 131072}")
            k("s_waitcnt lgkmcnt(0)")
            k("v_mov_b32 v40, s88")
            k("v_mov_b32 v41, s90")
            k("s_mov_b64 exec, 1")
            k(f"buffer_store_dwordx2 v[40:41], v{V_L16}, {WS}, s{S_T0} offen")
            k("s_mov_b64 exec, -1")
        k(f"s_branch {nored}")
        k(f"L_t012_{tag}:")
        prefetch_setup()
        k(f"s_waitcnt vmcnt({2 + t2})")
        k(f"ds_read_b128 v[76:79], v{V_KVM}")
        k(f"v_mov_b64 v[84:85], {sr(S_SENT2, 2)}")
        k(f"v_mov_b64 v[86:87], {sr(S_SENT2, 2)}")
        k(f"s_sub_u32 s{S_T0}, s{S_STEP}, 1")
        k(f"v_mov_b32 v48, s{S_T0}")
        k(f"s_add_u32 s{S_T0}, s{S_MRR}, s{S_RO}")
        k(f"s_mov_b32 m0, s{S_RM0}")
        k(f"s_cmp_eq_u32 s{S_W}, 2")
        k("s_waitcnt lgkmcnt(0)")
        k(f"v_cndmask_b32 v76, v76, v48, {sr(S_W2M, 2)}")
        k("s_barrier")
        k(f"buffer_load_dwordx4 v{V_L16}, {WS}, s{S_T0} offen sc1 lds")
        k(f"s_cbranch_scc1 L_tb_{tag}")
        k(f"buffer_load_dwordx4 v{V_L16}, {WS}, s{S_T0} offen offset:1024 sc1 lds")
        k(f"s_branch L_tb_{tag}")
        for n in range(ns):
            k(f"L_rred{n}_{tag}:")
            k(f"s_add_u32 s{S_CNT}, s{S_CNT}, 1")
            if n == ns - 1:
                self.seldom(f"L_bred_{tag}", [SET[n][0] + i for i in range(4)] + [SET[n][1] + i for i in range(4)])
            gather(n)
            if n == ns - 1:
                k(f"s_branch L_red0_{tag}")
            else:
                attempt(n + 1, f"L_rred{n + 1}_{tag}")
                k(f"s_branch L_bred_{tag}")

        k(f"L_rl_{tag}:")
        for n in range(natt):
            new, old = SR[n], SR[(n + 1) % natt]
            k(f"s_add_u32 s{S_CL}, s{S_CL}, 1")
            if natt > 1:
                k(f"s_waitcnt vmcnt({6 * natt - 7})")
                k(f"v_cmp_u_f32 vcc, v{old}, v{old + 1}")
                k(f"s_cbranch_vccz L_bl2_{tag}")
            self.sample(False, new)
            self.mem_dma(False)
            if natt == 1:
                k(f"s_waitcnt vmcnt(5)")
                k(f"v_cmp_u_f32 vcc, v{old}, v{old + 1}")
                k(f"s_cbranch_vccz L_bl_{tag}")
        self.exact_check([82, 83])
        k(f"s_cbranch_scc0 L_bl2_{tag}")
        self.spin()
        k(f"s_branch L_rl_{tag}")
        k(f"L_bl2_{tag}:")
        self.sample(True, 80)
        k("s_barrier")
        k(f"s_waitcnt vmcnt({max(6 * natt - 11, 1)})")
        k(f"s_branch L_tb_{tag}")

        k(f"L_rr_{tag}:")
        self.exact_check([80, 81])
        k(f"s_cbranch_scc0 L_br_{tag}")
        k(f"s_add_u32 s{S_CR}, s{S_CR}, 1")
        self.spin()
        self.sample(True, 80)
        self.mem_dma(True)
        k("s_waitcnt vmcnt(0)")
        k(f"s_branch L_rr_{tag}")
        k(f"L_bad_{tag}:")
        k(f"s_mov_b64 {sr(S_TA, 2)}, 0")
        for c in range(10):
            self.frag(76, c)
            k("s_waitcnt lgkmcnt(0)")
            for r in range(76, 80):
                k(f"v_cmp_eq_u32 vcc, s{S_SENT}, v{r}")
                k(f"s_or_b64 {sr(S_TA, 2)}, {sr(S_TA, 2)}, vcc")
        clean = k.label("clean")
        k(f"s_cbranch_scc0 {clean}")
        self.spin()
        k("s_barrier")
        self.mem_dma(False)
        self.mem_dma(True)
        k("s_waitcnt vmcnt(0)")
        k("s_barrier")
        k(f"s_branch L_bad_{tag}")
        k(f"{clean}:")
        for r in range(16, 40, 2):
            k(f"v_mov_b64 {vr(r, 2)}, 0")
        for c in range(10):
            self.frag(76, c)
            for m in ("v0", "v1"):
                if (m, c) in LDS_OF:
                    self.lds_unit(U[int(m[1])], (m, c))
            k("s_waitcnt lgkmcnt(0)")
            for m in MATS:
                if m[0] != "v" or c < 5 or c == 9 or (m, c) == ("v0", 8):
                    smf(ACC[m], 76, U[int(m[1])] if (m, c) in LDS_OF else REG_OF[(m, c)])
        for t in range(2):
            self.kxpart(U[t], t, 0)
            self.kxpart(U[t], t, 1)
        self.frag(F[2], 8)
        self.frag(F[1], 5)
        self.frag(F[0], 6)
        for r in (16, 17, 20, 21, 24):
            k(f"v_add_f32 v{r}, v{r}, v{r + 2}")
        k("v_cvt_pk_bf16_f32 v82, v16, v20")
        k("v_cvt_pk_bf16_f32 v83, v17, v21")
        k(f"ds_write2_b32 v{V_QW}, v82, v83 offset0:0 offset1:136")
        k("s_waitcnt lgkmcnt(0)")
        k(f"s_cmp_eq_u32 s{S_RED}, 0")
        k(f"s_branch L_bbad_{tag}")
        k(f"L_max_{tag}:")
        k("s_waitcnt lgkmcnt(0)")
        k(f"ds_read_b128 v[76:79], v{V_QR}")
        k(f"ds_read_b128 v[80:83], v{V_QR} offset:64")
        k(f"ds_read_b128 {vr(F[0], 4)}, v{V_KR}")
        k(f"ds_read_b128 {vr(F[1], 4)}, v{V_KR} offset:64")
        for t in range(4):
            self.kxpart(KT[t], t, 0)
            self.kxpart(KT[t], t, 1)
        k("s_waitcnt lgkmcnt(0)")
        for t in range(5):
            xs(t, 0)
            xs(t, 1)
        for t in range(4):
            sa(t, 0)
            sa(t, 1)
        k(f"v_add_f32_dpp v64, v42, v40 {ROR8}")
        k(f"v_add_f32_dpp v65, v43, v41 {ROR8}")
        k(f"v_mul_f32 v64, s{S_C}, v64")
        k(f"v_mul_f32 v65, s{S_C}, v65")
        for i in range(6):
            wu(i)
        k("v_max3_f32 v82, v84, v85, v86")
        k("v_max_f32 v82, v82, v87")
        k(f"s_mov_b64 exec, {sr(S_B0, 2)}")
        k("v_max3_f32 v82, v82, v64, v65")
        k("s_mov_b64 exec, -1")
        k(f"v_max_f32_dpp v82, v82, v82 {ROR8}")
        k("v_mov_b32 v83, v82")
        k("v_permlane16_swap_b32 v82, v83")
        k("v_max_f32 v82, v82, v83")
        k("v_mov_b32 v83, v82")
        k("v_permlane32_swap_b32 v82, v83")
        k("v_max_f32 v82, v82, v83")
        for r in [84, 85, 86, 87, 64, 65]:
            k(f"v_sub_f32 v{r}, v{r}, v82")
            k(f"v_exp_f32 v{r}, v{r}")
        k("v_cvt_pk_bf16_f32 v60, v84, v85")
        k("v_cvt_pk_bf16_f32 v61, v86, v87")
        k("v_cvt_pk_bf16_f32 v80, v64, v65")
        k("v_cvt_pk_bf16_f32 v83, v64, v65")
        k("v_mov_b32 v81, 0")
        k("v_mov_b32 v82, 0")
        k(f"v_mov_b32_dpp v62, v60 {ROR8}")
        k(f"v_mov_b32_dpp v63, v61 {ROR8}")
        k("v_mov_b64 v[64:65], 0")
        for x in pv():
            k(x)
        k("v_rcp_f32 v45, v44")
        for i in range(8):
            k(f"v_mul_f32 v{32 + i}, v{32 + i}, v45")
        for i in range(4):
            k(f"v_cvt_pk_bf16_f32 v{84 + i}, v{32 + 2 * i}, v{33 + 2 * i}")
        k(f"s_mov_b64 exec, {sr(S_B0, 2)}")
        k(f"ds_write_b128 v{V_OW}, v[84:87]")
        k(f"s_mov_b64 exec, -1")
        k(f"s_branch L_bmax2_{tag}")
        k(f"L_rdy_{tag}:")
        self.ready_poll(82, 83)
        k(f"s_branch L_brdy_{tag}")
        k(f"L_done_{tag}:")
        k(f"ds_write2_b32 v{V_VW}, v14, v15 offset0:0 offset1:64")
        k(f"s_add_u32 s{S_KVM}, s{S_KVM}, s{S_KVS}")
        k("s_waitcnt vmcnt(0) lgkmcnt(0)")
        k("s_barrier")
        k(f"ds_read_b128 v[76:79], v{V_KVM}")
        k(f"v_mov_b32 v48, {self.nsteps - 1}")
        k("s_waitcnt lgkmcnt(0)")
        k(f"v_cndmask_b32 v76, v76, v48, {sr(S_W2M, 2)}")
        k(f"s_mov_b64 exec, {sr(S_KVX, 2)}")
        k(f"buffer_store_dwordx4 v[76:79], v{V_L16}, {WS}, s{S_KVM} offen sc1")
        k("s_mov_b64 exec, -1")
        k(f"v_mov_b32 v48, {self.nsteps}")
        k(f"s_cmp_eq_u32 s{S_W}, 2")
        k(f"s_cselect_b32 s{S_T0}, s{S_KVM}, {OOB:#x}")
        k("s_waitcnt vmcnt(0)")
        k("s_barrier")
        k("s_mov_b64 exec, 1")
        k(f"buffer_store_dword v48, v{V_L16}, {WS}, s{S_T0} offen sc1")
        k("s_mov_b64 exec, -1")

    def ready_poll(self, t0, t1):
        k = self.k
        if self.opt.get("noready"):
            k(f"s_mov_b32 s{S_READY}, 128")
            return
        lp = k.label("rdy")
        k(f"{lp}:")
        self.spin()
        k(f"v_lshrrev_b32 v{t0}, 2, v{V_L16}")
        k(f"v_and_b32 v{t0}, 12, v{t0}")
        k(f"buffer_load_dword v{t1}, v{t0}, {WS}, s{S_PRG} offen sc1")
        k(f"v_lshrrev_b32 v{t0}, 2, v{t0}")
        k("s_waitcnt vmcnt(0)")
        k(f"v_mad_u32_u24 v{t1}, v{t1}, 3, v{t0}")
        k(f"v_readlane_b32 s{S_READY}, v{t1}, 0")
        for i in range(1, 3):
            k(f"v_readlane_b32 s{S_T0}, v{t1}, {i}")
            k(f"s_min_u32 s{S_READY}, s{S_READY}, s{S_T0}")
        k(f"s_cmp_ge_u32 s{S_READY}, 64")
        k(f"s_cselect_b32 s{S_READY}, 128, s{S_READY}")
        k(f"s_cmp_ge_u32 s{S_T3}, s{S_READY}")
        k(f"s_cbranch_scc1 {lp}")

    def load_weights(self, SQ, SK, SV, SO, claim):
        k = self.k
        VS, VS2, t0, t1, lane, f = [64, 65], [66, 67], 84, 85, 86, 87
        VT, VT2 = [[68, 69], [70, 71]], [72, 73, 74, 75]
        S_LB, S_RB, S_OB, S_RG = 67, 77, S_TA, S_TA + 1
        k(f"v_mov_b32 v{lane}, v0")
        k(f"v_lshrrev_b32 v{t0}, 5, v{lane}")
        k(f"v_bfe_u32 v{t1}, v{lane}, 4, 1")
        k(f"v_lshl_add_u32 v{t0}, v{t0}, 3, v{t1}")
        k(f"v_lshlrev_b32 v{t0}, 13, v{t0}")
        k(f"v_lshrrev_b32 v{t1}, 3, v{lane}")
        k(f"v_and_b32 v{t1}, 6, v{t1}")
        k(f"v_xor_b32 v{t1}, v{t1}, v{lane}")
        k(f"v_and_b32 v{t1}, 15, v{t1}")
        k(f"v_lshl_add_u32 v{VS[0]}, v{t1}, 4, v{t0}")
        k(f"v_xor_b32 v{VS[1]}, 128, v{VS[0]}")
        k(f"s_mul_i32 s{S_RG}, s{S_W}, {LDS_WAVE_W}")
        k(f"s_add_u32 s{S_RG}, s{S_RG}, {LDS_W}")
        k(f"s_lshl_b32 s{S_T0}, s{S_H}, 8")
        k(f"s_lshl_b32 s{S_T1}, s{S_W}, 17")
        k(f"s_add_u32 s{S_T0}, s{S_T0}, s{S_T1}")
        k(f"s_mul_i32 s{S_T1}, s{S_A}, {320 * 8192}")
        k(f"s_add_u32 s{S_LB}, s{S_T0}, s{S_T1}")
        k(f"s_sub_u32 s{S_T1}, {320 * 8192}, s{S_T1}")
        k(f"s_add_u32 s{S_RB}, s{S_T0}, s{S_T1}")
        items = [(m, c) for c in range(10) for m in "qk"] + [("v", c) for c in range(4, 10)] + [("o", 2)]
        items += [("v", c) for c in range(4)] + [("o", t) for t in (0, 1, 3, 4)]
        assert len(items) == 35
        slot = lambda i: 4096 * ((i + 5) % 8)

        def dma(i):
            m, c = items[i]
            for q in range(4):
                k(f"s_add_u32 m0, s{S_RG}, {slot(i) + 1024 * q}")
                if m == "o":
                    k(f"s_add_u32 s{S_T0}, s{S_OB}, {(16 * (q & 1) + 4 * (q >> 1)) * 1280 + 128 * c}")
                    k(f"buffer_load_dwordx4 v{VS2[q & 1]}, {sr(SO, 4)}, s{S_T0} offen lds")
                else:
                    k(f"s_add_u32 s{S_T0}, s{S_LB if c < 5 else S_RB}, {(64 * (c % 5) + 2 * q) * 8192}")
                    k(f"buffer_load_dwordx4 v{VS[q >> 1]}, {sr({'q': SQ, 'k': SK, 'v': SV}[m], 4)}, s{S_T0} offen lds")

        for i in range(8):
            dma(i)
        claim()
        k(f"v_bfe_u32 v{t0}, v{lane}, 3, 1")
        k(f"v_lshrrev_b32 v{t1}, 5, v{lane}")
        k(f"v_lshl_add_u32 v{t0}, v{t1}, 1, v{t0}")
        k(f"v_bfe_u32 v{t1}, v{lane}, 4, 1")
        k(f"v_lshl_add_u32 v{t0}, v{t1}, 5, v{t0}")
        k(f"v_mul_u32_u24 v{t0}, 1280, v{t0}")
        k(f"v_lshlrev_b32 v{t1}, 1, v{t1}")
        k(f"v_xor_b32 v{t1}, v{t1}, v{lane}")
        k(f"v_and_b32 v{t1}, 7, v{t1}")
        k(f"v_lshl_add_u32 v{VS2[0]}, v{t1}, 4, v{t0}")
        k(f"v_xor_b32 v{VS2[1]}, 64, v{VS2[0]}")
        k(f"s_mul_i32 s{S_T0}, s{S_H}, {128 * 1280}")
        k(f"s_mul_i32 s{S_T1}, s{S_A}, 640")
        k(f"s_add_u32 s{S_T0}, s{S_T0}, s{S_T1}")
        k(f"s_lshr_b32 s{S_T1}, s{S_W}, 1")
        k(f"s_mul_i32 s{S_T1}, s{S_T1}, {64 * 1280}")
        k(f"s_add_u32 s{S_T0}, s{S_T0}, s{S_T1}")
        k(f"s_and_b32 s{S_T1}, s{S_W}, 1")
        k(f"s_mul_i32 s{S_T1}, s{S_T1}, {8 * 1280}")
        k(f"s_add_u32 s{S_OB}, s{S_T0}, s{S_T1}")
        k(f"v_bfe_u32 v{f}, v{lane}, 2, 3")
        k(f"v_lshrrev_b32 v{t0}, 5, v{lane}")
        k(f"v_mul_u32_u24 v{t0}, {LDS_WAVE_W}, v{t0}")
        k(f"v_bfe_u32 v{t1}, v{lane}, 2, 2")
        k(f"v_lshl_add_u32 v{t0}, v{t1}, 8, v{t0}")
        k(f"v_bfe_u32 v{t1}, v{lane}, 4, 1")
        k(f"v_lshl_add_u32 v{t0}, v{t1}, 11, v{t0}")
        k(f"v_and_b32 v{t1}, 3, v{lane}")
        k(f"v_lshl_add_u32 v{t0}, v{t1}, 3, v{t0}")
        k(f"s_lshl_b32 s{S_T0}, s{S_W}, 1")
        k(f"v_xor_b32 v{t1}, s{S_T0}, v{f}")
        k(f"v_lshl_add_u32 v{t0}, v{t1}, 5, v{t0}")
        k(f"v_add_u32 v{VT[0][0]}, {LDS_W}, v{t0}")
        k(f"v_add_u32 v{VT[0][1]}, {LDS_W + 2 * LDS_WAVE_W}, v{t0}")
        k(f"v_xor_b32 v{VT[1][0]}, 32, v{VT[0][0]}")
        k(f"v_xor_b32 v{VT[1][1]}, 32, v{VT[0][1]}")
        k(f"v_lshrrev_b32 v{t0}, 4, v{lane}")
        k(f"v_lshlrev_b32 v{t0}, 10, v{t0}")
        k(f"v_bfe_u32 v{t1}, v{lane}, 2, 2")
        k(f"v_lshl_add_u32 v{t0}, v{t1}, 7, v{t0}")
        k(f"v_and_b32 v{t1}, 3, v{lane}")
        k(f"v_lshl_add_u32 v{t0}, v{t1}, 3, v{t0}")
        k(f"v_bfe_u32 v{t1}, v{lane}, 3, 2")
        k(f"v_xor_b32 v{t1}, s{S_W}, v{t1}")
        k(f"v_lshl_add_u32 v{t0}, v{t1}, 5, v{t0}")
        for q in range(4):
            k(f"v_add_u32 v{VT2[q]}, {LDS_W + q * LDS_WAVE_W}, v{t0}")
        self.consts()
        back = []
        for i in range(36):
            if i < 35:
                k(f"s_waitcnt vmcnt({4 * (min(35, max(8, i + 7)) - i - 1)})")
            k("s_barrier")
            for d, u in back:
                k(f"ds_write_b128 v{V_WL}, {vr(d, 4)} offset:{LDS_OF[u]}")
                k(f"ds_write_b128 v{V_WL}, {vr(d + 4, 4)} offset:{LDS_OF[u] + 1024}")
            back = []
            if i == 35:
                break
            if i >= 1 and i + 7 < 35:
                dma(i + 7)
            m, c = items[i]
            for t in range(2):
                u = ("o", c, t) if m == "o" else (m + str(t), c)
                d = REG_OF[u] if u in REG_OF else 16 + 8 * t + 16 * (i & 1)
                if u in LDS_OF:
                    back.append((d, u))
                    assert u == ("v0", 4) or LDS_OF[u] == slot(i) + 2048 * t
                for jj in range(4):
                    if m == "o":
                        k(f"ds_read_b64_tr_b16 {ur(d + 2 * jj, 2)}, v{VT2[2 * t + (jj >> 1)]} offset:{slot(i) + 512 * (jj & 1)}")
                    else:
                        k(f"ds_read_b64_tr_b16 {ur(d + 2 * jj, 2)}, v{VT[t][jj >> 1]} offset:{slot(i) + 1024 * (jj & 1)}")
            k("s_waitcnt lgkmcnt(0)")
        k("s_waitcnt lgkmcnt(0)")

    def mem0_piece(self, SM):
        k = self.k
        k(f"s_lshr_b32 s{S_T0}, s{S_RHO}, 2")
        k(f"s_lshl_b32 s{S_T0}, s{S_T0}, 5")
        k(f"s_mul_i32 s{S_T1}, s{S_A}, 640")
        k(f"s_add_u32 s{S_T0}, s{S_T0}, s{S_T1}")
        k(f"s_and_b32 s{S_T1}, s{S_RHO}, 3")
        k(f"s_mul_i32 s{S_T1}, s{S_T1}, 2560")
        k(f"s_add_u32 s{S_T0}, s{S_T0}, s{S_T1}")
        k(f"v_lshrrev_b32 v60, 8, v{V_L16}")
        k(f"v_and_b32 v60, 1, v60")
        k(f"v_mul_u32_u24 v60, 1280, v60")
        k(f"v_lshrrev_b32 v61, 1, v{V_L16}")
        k(f"v_and_b32 v61, 24, v61")
        k(f"v_add_u32 v60, v60, v61")
        k(f"buffer_load_dwordx2 v[80:81], v60, {sr(SM, 4)}, s{S_T0} offen")
        k("s_waitcnt vmcnt(0)")
        k(f"v_mov_b32 v60, {SENT | 0x00400040:#x}")
        for r in (80, 81):
            k(f"v_cmp_eq_u32 vcc, s{S_SENT}, v{r}")
            k(f"v_cndmask_b32 v{r}, v{r}, v60, vcc")
        self.widen(80)

    def dump_stamps(self, tag):
        k = self.k
        k("s_waitcnt lgkmcnt(0)")
        k(f"s_sub_u32 s{S_T0}, s{S_STAMP + 2}, s{S_STAMP}")
        k(f"s_add_u32 s{S_STAMP + 4}, s{S_STAMP + 4}, s{S_T0}")

    def write_stamps(self):
        k = self.k
        k(f"v_mov_b32 v60, s{S_STAMP + 4}")
        k(f"v_mov_b32 v61, s{S_CNT}")
        k(f"v_mov_b32 v62, s{S_CL}")
        k(f"v_mov_b32 v63, s{S_CR}")
        k(f"s_lshl_b32 s{S_T0}, s{S_A}, 5")
        k(f"s_add_u32 s{S_T0}, s{S_T0}, s{S_H}")
        k(f"s_lshl_b32 s{S_T0}, s{S_T0}, 2")
        k(f"s_add_u32 s{S_T0}, s{S_T0}, s{S_W}")
        k(f"s_lshl_b32 s{S_T0}, s{S_T0}, 4")
        k(f"s_add_u32 s{S_T0}, s{S_T0}, {WS_STAMP}")
        k(f"s_mov_b64 exec, 1")
        k(f"buffer_store_dwordx4 v[60:63], v{V_L16}, {WS}, s{S_T0} offen")
        k(f"s_mov_b64 exec, -1")
```

```python
import math
from asmlib import vr, ur, sr, ar
from layout import *
from chain import S_WS, S_W, S_SPIN, S_T0, S_T1, S_T2, S_T3, S_TA, WS, OOB, fbits

S_WI = 8
S_DBG = 84
S_OUT = 88
S_WT = 92
S_X = 96
DBG, OUT, WT, XS = sr(S_DBG, 4), sr(S_OUT, 4), sr(S_WT, 4), sr(S_X, 4)
S_WB = 13
S_XO, S_XST, S_OO, S_OST, S_N, S_FL, S_IT, S_BUF, S_BUFD, S_LEFT = 14, 15, 16, 17, 18, 19, 20, 21, 22, 23
S_RING = 24
S_C = 25
S_M = 26
S_SEG, S_TEAM, S_J, S_WANT = 28, 29, 30, 31
S_U0, S_U1, S_U2, S_U3 = 32, 33, 34, 35
S_BLK = 44
S_G, S_CG, S_TG = 9, 64, 65
S_PO = 66

V_LANE, V_L16, V_TR, V_S0, V_S1, V_XS = 0, 1, 2, 3, 4, 5
V_XR = 6
V_XA = 10
V_O0, V_O1, V_T0, V_T1, V_T2, V_T3 = 14, 15, 16, 17, 18, 19
WREG = 192
NEG = fbits(-1.0e30)


class Worker:
    def __init__(self, k, **opt):
        self.k = k
        self.opt = opt

    def spin(self):
        self.k(f"s_sub_u32 s{S_SPIN}, s{S_SPIN}, 1")
        self.k(f"s_cbranch_scc1 L_abort")

    def srd(self, s, karg, nbytes):
        k = self.k
        k(f"s_load_dwordx2 {sr(s, 2)}, s[0:1], {karg}")
        k("s_waitcnt lgkmcnt(0)")
        k(f"s_mov_b32 s{s + 2}, {nbytes}")
        k(f"s_mov_b32 s{s + 3}, 0x20000")

    def base_consts(self):
        k = self.k
        k(f"v_lshlrev_b32 v{V_L16}, 4, v{V_LANE}")
        k(f"s_lshl_b32 s{S_RING}, s{S_W}, 15")

    def tr_addr(self, colmap):
        k = self.k
        k(f"v_lshrrev_b32 v{V_T0}, 5, v{V_LANE}")
        k(f"v_lshlrev_b32 v{V_T0}, 9, v{V_T0}")
        k(f"v_and_b32 v{V_T1}, 12, v{V_LANE}")
        k(f"v_lshl_add_u32 v{V_T0}, v{V_T1}, 4, v{V_T0}")
        k(f"v_lshrrev_b32 v{V_T1}, 2, v{V_LANE}")
        k(f"v_and_b32 v{V_T1}, 4, v{V_T1}")
        k(f"v_and_or_b32 v{V_T1}, v{V_LANE}, 3, v{V_T1}")
        if colmap == "clamp":
            k(f"v_min_u32 v{V_T1}, 4, v{V_T1}")
        elif colmap == "wide":
            k(f"v_and_b32 v{V_T2}, 1, v{V_T1}")
            k(f"v_lshrrev_b32 v{V_T1}, 1, v{V_T1}")
            k(f"v_lshl_add_u32 v{V_T1}, v{V_T2}, 2, v{V_T1}")
        k(f"v_lshl_add_u32 v{V_T0}, v{V_T1}, 3, v{V_T0}")
        k(f"v_add_u32 v{V_TR}, s{S_RING}, v{V_T0}")

    def src_rows(self, dst, stride, rowmap):
        k = self.k
        if rowmap == "id":
            k(f"v_lshrrev_b32 v{V_T0}, 2, v{V_LANE}")
        else:
            mb, mh, add = (8, 4, 0) if rowmap == "perm" else (40, 20, 16)
            k(f"v_bfe_u32 v{V_T0}, v{V_LANE}, 2, 2")
            k(f"v_bfe_u32 v{V_T1}, v{V_LANE}, 4, 1")
            k(f"v_mad_u32_u24 v{V_T0}, v{V_T1}, {mb}, v{V_T0}")
            k(f"v_lshrrev_b32 v{V_T1}, 5, v{V_LANE}")
            k(f"v_mad_u32_u24 v{V_T0}, v{V_T1}, {mh}, v{V_T0}")
            if add:
                k(f"v_add_u32 v{V_T0}, {add}, v{V_T0}")
        k(f"v_mul_u32_u24 v{V_T0}, {stride}, v{V_T0}")
        k(f"v_and_b32 v{V_T1}, 3, v{V_LANE}")
        k(f"v_lshl_add_u32 v{dst}, v{V_T1}, 4, v{V_T0}")

    def load_weights(self, frags, lines=False, first=None):
        k = self.k
        n = len(frags)

        def dma(i):
            v, c, _ = frags[i]
            k(f"s_add_u32 m0, s{S_RING}, {1024 * (i % 32)}")
            k(f"s_add_u32 s{S_T0}, s{S_WB}, {c}")
            k(f"buffer_load_dwordx4 v{v}, {WT}, s{S_T0} offen lds")

        if first is None:
            k("s_waitcnt vmcnt(0) lgkmcnt(0)")
            k("s_barrier")
        for i in range(32):
            dma(i)
        if first is not None:
            first()
        for b in range(0, n, 8):
            left = min(n, b + 32) - (b + 8)
            k(f"s_waitcnt vmcnt({left})")
            for i in range(b, b + 8):
                d = frags[i][2]
                a, o, m = ([V_TR, V_S1][i & 1], 1024 * ((i % 32) & ~1), 512) if lines else (V_TR, 1024 * (i % 32), 256)
                k(f"ds_read_b64_tr_b16 {ur(d, 2)}, v{a} offset:{o}")
                k(f"ds_read_b64_tr_b16 {ur(d + 2, 2)}, v{a} offset:{o + m}")
                if i % 4 == 3:
                    k("s_waitcnt lgkmcnt(0)")
            for i in range(b + 32, min(n, b + 40)):
                dma(i)
        k("s_barrier")

    def x_consts(self, linear):
        k = self.k
        if linear:
            k(f"s_lshl_b32 s{S_T0}, s{S_W}, 10")
            k(f"v_add_u32 v{V_XS}, s{S_T0}, v{V_L16}")
            for q in range(4):
                k(f"v_add_u32 v{V_XR + q}, {1024 * q}, v{V_L16}")
            return
        k(f"s_lshl_b32 s{S_T0}, s{S_W}, 3")
        k(f"v_lshrrev_b32 v{V_T0}, 3, v{V_LANE}")
        k(f"v_add_u32 v{V_T0}, s{S_T0}, v{V_T0}")
        k(f"v_lshrrev_b32 v{V_T1}, 1, v{V_T0}")
        k(f"v_xor_b32 v{V_T1}, v{V_T1}, v{V_LANE}")
        k(f"v_and_b32 v{V_T1}, 7, v{V_T1}")
        k(f"v_mul_u32_u24 v{V_T0}, 1280, v{V_T0}")
        k(f"v_lshl_add_u32 v{V_XS}, v{V_T1}, 4, v{V_T0}")
        k(f"v_and_b32 v{V_T0}, 31, v{V_LANE}")
        k(f"v_bfe_u32 v{V_T1}, v{V_LANE}, 1, 3")
        k(f"v_lshrrev_b32 v{V_T2}, 5, v{V_LANE}")
        k(f"v_xor_b32 v{V_T1}, v{V_T1}, v{V_T2}")
        k(f"v_lshlrev_b32 v{V_T0}, 7, v{V_T0}")
        for q in range(4):
            k(f"v_xor_b32 v{V_T2}, {2 * q}, v{V_T1}")
            k(f"v_lshl_add_u32 v{V_XR + q}, v{V_T2}, 4, v{V_T0}")

    def x_dma(self, linear):
        srd, sfx, kbs = (WS, " sc1", 4096) if linear else (XS, "", 128)
        g = []
        for kb in range(10):
            g.append([f"s_add_u32 m0, s{S_BUFD}, {4096 * kb}",
                      f"s_add_u32 s{S_T0}, s{S_T1}, {kbs * kb}",
                      f"buffer_load_dwordx4 v{V_XS}, {srd}, s{S_T0} offen{sfx} lds"])
        return g

    def x_next(self):
        k = self.k
        k(f"s_cmp_gt_i32 s{S_LEFT}, 0")
        k(f"s_cselect_b32 s{S_T1}, s{S_XO}, {OOB:#x}")
        k(f"s_sub_u32 s{S_LEFT}, s{S_LEFT}, 1")
        k(f"s_add_u32 s{S_XO}, s{S_XO}, s{S_XST}")

    def buf_next(self, s, lo):
        k = self.k
        k(f"s_add_u32 s{s}, s{s}, 40960")
        k(f"s_cmp_ge_u32 s{s}, {3 * 40960}")
        k(f"s_cselect_b32 s{s}, s{lo}, s{s}" if lo is not None else f"s_cselect_b32 s{s}, 0, s{s}")

    XF = 160

    def x_rd(self, ks):
        self.k(f"ds_read_b128 {vr(self.XF + 4 * (ks % 4), 4)}, v{V_XA + (ks & 3)} offset:{4096 * (ks >> 2)}")

    def x_open(self):
        k = self.k
        for q in range(4):
            k(f"v_add_u32 v{V_XA + q}, s{S_BUF}, v{V_XR + q}")
        k("s_waitcnt vmcnt(10)")
        k("s_barrier")
        for ks in range(3):
            self.x_rd(ks)

    def gemm_prologue(self, linear):
        k = self.k
        k(f"s_mov_b32 s{S_LEFT}, s{S_N}")
        k(f"s_lshl_b32 s{S_U0}, s{S_W}, 10")
        k(f"s_mov_b32 s{S_BUFD}, s{S_U0}")
        k(f"s_mov_b32 s{S_BUF}, 0")
        k(f"s_mov_b32 s{S_IT}, 0")
        k(f"s_mov_b32 s{S_PO}, {OOB:#x}")
        k(f"v_mov_b32 v{V_T0}, 0")
        for _ in range(2):
            self.x_next()
            for g in self.x_dma(linear):
                for x in g: k(x)
            self.buf_next(S_BUFD, S_U0)
        self.x_open()

    def gemm_loop(self, kind):
        k = self.k
        linear = kind == "out"
        swap = kind in ("v", "bv")
        ACC, XF, PK = [128, 144], self.XF, 176

        def stores():
            out = []
            for T in range(2):
                P = PK + 8 * T
                if kind in ("qk", "v", "bv"):
                    out += [f"buffer_store_dwordx4 {vr(P + 4 * u, 4)}, v{V_L16}, {WS}, s{S_PO} offen offset:{2048 * T + 1024 * u} sc1" for u in range(2)]
                elif kind == "bqk":
                    out += [f"buffer_store_dwordx4 {vr(P, 4)}, v{V_L16}, {WS}, s{S_PO} offen offset:{1280 * T} sc1",
                            f"buffer_store_dwordx2 {vr(P + 4, 2)}, v{V_O0}, {WS}, s{S_PO} offen offset:{1280 * T + 1024} sc1"]
                else:
                    out += [f"buffer_store_dwordx4 {vr(P + 4 * u, 4)}, v{V_O0}, {OUT}, s{S_PO} offen offset:{64 * T + 16 * u}" for u in range(2)]
            return out

        top = k.label("gemm")
        k(f"{top}:")
        self.x_next()
        side = [["s_mov_b64 exec, 1", f"buffer_store_dword v{V_T0}, v{V_L16}, {WS}, s{S_FL} offen sc1", "s_mov_b64 exec, -1"]]
        side += [[x] for x in stores()] + self.x_dma(linear)
        for ks in range(40):
            k(f"s_waitcnt lgkmcnt({min(2, 39 - ks)})")
            for T in range(2):
                w, x = ur(WREG + 4 * (T * 40 + ks), 4), vr(XF + 4 * (ks % 4), 4)
                a, b = (x, w) if swap else (w, x)
                c = "0" if ks == 0 else vr(ACC[T], 16)
                k(f"v_mfma_f32_32x32x16_bf16 {vr(ACC[T], 16)}, {a}, {b}, {c}")
                if T == 0 and ks + 3 < 40:
                    self.x_rd(ks + 3)
                if T == 1 and ks % 2 == 0 and side:
                    for x_ in side.pop(0): k(x_)
                if T == 0 and ks == 38:
                    self.buf_next(S_BUFD, S_U0)
                    k(f"v_mov_b32 v{V_T0}, s{S_IT}")
                if T == 1 and ks == 38:
                    self.buf_next(S_BUF, None)
                    k(f"s_add_u32 s{S_IT}, s{S_IT}, 1")
        assert not side
        self.x_open()
        k(f"s_mov_b32 s{S_PO}, s{S_OO}")
        k(f"s_add_u32 s{S_OO}, s{S_OO}, s{S_OST}")
        k(f"s_cmp_lt_u32 s{S_IT}, s{S_N}")
        for T in range(2):
            D, P = ACC[T], PK + 8 * T
            cv = lambda d, lo, hi: k(f"v_cvt_pk_bf16_f32 v{P + d}, v{D + lo}, v{D + hi}")
            if kind in ("qk", "bqk"):
                for i in range(0, 16 if kind == "qk" else 12, 2):
                    k(f"v_pk_mul_f32 {vr(D + i, 2)}, {vr(D + i, 2)}, {sr(S_M, 2)}")
            if kind == "qk":
                for u in range(2):
                    for i in range(4):
                        cv(4 * u + i, 4 * u + i, 4 * u + 8 + i)
            elif swap:
                for u in range(2):
                    cv(4 * u, 2 * u, 4 + 2 * u)
                    cv(4 * u + 1, 8 + 2 * u, 12 + 2 * u)
                    cv(4 * u + 2, 2 * u + 1, 5 + 2 * u)
                    cv(4 * u + 3, 9 + 2 * u, 13 + 2 * u)
                if kind == "bv":
                    for i in range(8):
                        k(f"v_cndmask_b32 v{P + i}, v{P + i}, v{V_O1}, {sr(S_M, 2)}")
            else:
                for i in range(8 if kind == "out" else 6):
                    cv(i, 2 * i, 2 * i + 1)
        k(f"s_cbranch_scc1 {top}")
        for x in stores(): k(x)
        k("s_waitcnt lgkmcnt(0)")

    def gemm_finish(self):
        k = self.k
        k("s_waitcnt vmcnt(0)")
        k("s_barrier")
        k(f"v_mov_b32 v{V_T0}, s{S_N}")
        k("s_mov_b64 exec, 1")
        k(f"buffer_store_dword v{V_T0}, v{V_L16}, {WS}, s{S_FL} offen sc1")
        k("s_mov_b64 exec, -1")

    def poll(self, srd, soff, want, mask=None, nd=1, sh=2):
        k = self.k
        lp, done = k.label("poll"), k.label("polled")
        k(f"s_cmp_lg_u32 s{S_W}, 0")
        k(f"s_cbranch_scc1 {done}")
        k(f"v_and_b32 v{V_T1}, {nd - 1}, v{V_LANE}")
        k(f"v_lshlrev_b32 v{V_T1}, {sh}, v{V_T1}")
        k(f"{lp}:")
        k(f"buffer_load_dword v{V_T0}, v{V_T1}, {srd}, {soff} offen sc1")
        k("s_waitcnt vmcnt(0)")
        if mask:
            k(f"v_and_b32 v{V_T0}, {mask:#x}, v{V_T0}")
        k(f"v_cmp_gt_u32 vcc, {want}, v{V_T0}")
        k(f"s_cbranch_vccz {done}")
        self.spin()
        k("s_sleep 2")
        k(f"s_branch {lp}")
        k(f"{done}:")
        k("s_barrier")

    def arrive(self, srd, soff):
        k = self.k
        skip = k.label("arr")
        k("s_waitcnt vmcnt(0)")
        k("s_barrier")
        k(f"s_cmp_lg_u32 s{S_W}, 0")
        k(f"s_cbranch_scc1 {skip}")
        k(f"v_mov_b32 v{V_T0}, 1")
        k("s_mov_b64 exec, 1")
        k(f"buffer_atomic_add v{V_T0}, v{V_L16}, {srd}, {soff} offen")
        k("s_mov_b64 exec, -1")
        k(f"{skip}:")

    def init_flags(self, first_group):
        k = self.k
        if first_group:
            k(f"s_lshl_b32 s{S_T1}, s{S_CG}, 7")
            k(f"s_lshl_b32 s{S_T2}, s{S_TG}, 2")
            k(f"s_add_u32 s{S_T1}, s{S_T1}, s{S_T2}")
            k(f"s_add_u32 s{S_T1}, s{S_T1}, {FL_PROG}")
            k(f"s_lshl_b32 s{S_T2}, s{S_W}, 5")
            k(f"s_or_b32 s{S_T0}, s{S_CG}, s{S_T2}")
            k(f"s_cmp_lt_u32 s{S_T0}, 32")
            k(f"s_cselect_b32 s{S_FL}, s{S_T1}, {OOB:#x}")
            k(f"s_lshr_b32 s{S_T0}, s{S_G}, 4")
            k(f"s_lshl_b32 s{S_T0}, s{S_T0}, 7")
            k(f"s_add_u32 s{S_TEAM}, s{S_T0}, {FL_TEAM}")
            k(f"s_and_b32 s{S_J}, s{S_G}, 15")
            k(f"s_or_b32 s{S_T0}, s{S_J}, s{S_W}")
            k(f"s_cselect_b32 s{S_T1}, {OOB:#x}, s{S_TEAM}")
        else:
            k(f"s_mov_b32 s{S_FL}, {OOB:#x}")
            k(f"s_mov_b32 s{S_T1}, {OOB:#x}")
        k(f"v_mov_b32 v{V_T0}, 0")
        k("s_mov_b64 exec, 1")
        k(f"buffer_store_dword v{V_T0}, v{V_L16}, {WS}, s{S_FL} offen sc1")
        k(f"buffer_store_dword v{V_T0}, v{V_L16}, {WS}, s{S_T1} offen sc1")
        k("s_mov_b64 exec, -1")
        k(f"s_lshl_b32 s{S_T0}, s{S_WI}, 2")
        k(f"s_add_u32 s{S_U0}, s{S_T0}, s{S_W}")
        k(f"s_lshl_b32 s{S_T1}, s{S_U0}, 13")
        k(f"s_add_u32 s{S_T1}, s{S_T1}, {WS_MEMR}")
        k(f"s_sub_u32 s{S_T2}, s{S_U0}, 256")
        k(f"s_mul_i32 s{S_T3}, s{S_T2}, 5120")
        k(f"s_add_u32 s{S_T3}, s{S_T3}, {WS_INBOX}")
        k(f"s_cmp_lt_u32 s{S_U0}, 256")
        k(f"s_cselect_b32 s{S_T1}, s{S_T1}, s{S_T3}")
        k(f"s_sub_u32 s{S_T2}, s{S_U0}, 384")
        k(f"s_lshl_b32 s{S_T3}, s{S_T2}, 13")
        k(f"s_add_u32 s{S_T3}, s{S_T3}, {WS_MEML}")
        k(f"s_cmp_lt_u32 s{S_U0}, 384")
        k(f"s_cselect_b32 s{S_T1}, s{S_T1}, s{S_T3}")
        k(f"s_cmp_lt_u32 s{S_U0}, 392")
        k(f"s_cselect_b32 s{S_T1}, s{S_T1}, {OOB:#x}")
        for i in range(4):
            k(f"v_mov_b32 v{20 + i}, {SENT:#x}")
        for i in range(4):
            k(f"buffer_store_dwordx4 v[20:23], v{V_L16}, {WS}, s{S_T1} offen offset:{1024 * i} sc1")
        k(f"s_add_u32 s{S_T1}, s{S_T1}, 4096")
        k(f"buffer_store_dwordx4 v[20:23], v{V_L16}, {WS}, s{S_T1} offen sc1")
        k(f"s_sub_u32 s{S_T2}, s{S_U0}, 392")
        k(f"s_lshl_b32 s{S_T3}, s{S_T2}, 10")
        k(f"s_add_u32 s{S_T3}, s{S_T3}, {FL_CHAIN}")
        k(f"s_cmp_lt_u32 s{S_T2}, 2")
        k(f"s_cselect_b32 s{S_T1}, s{S_T3}, {OOB:#x}")
        k(f"buffer_store_dword v{V_T0}, v{V_L16}, {WS}, s{S_T1} offen sc1")
        self.srd(S_OUT, 40, 4096 * 1280)
        k(f"v_lshlrev_b32 v{V_T1}, 7, v{V_LANE}")
        k(f"s_lshl_b32 s{S_T0}, s{S_U0}, 13")
        k(f"buffer_load_dword v24, v{V_T1}, {OUT}, s{S_T0} offen")
        self.srd(S_OUT, 80, 2048 * 2560)

    def report_init(self, ch):
        k = self.k
        nopr, skip = k.label("nopr"), k.label("noinit")
        k("s_waitcnt vmcnt(0)")
        k("s_barrier")
        k(f"s_cmp_lg_u32 s{S_W}, 0")
        k(f"s_cbranch_scc1 {skip}")
        k(f"s_mov_b32 s{S_U1}, 0")
        k(f"s_cmp_lg_u32 s{S_WI}, 191")
        k(f"s_cbranch_scc1 {nopr}")
        ch.probe_polarity(S_U1)
        k(f"{nopr}:")
        k(f"s_lshl_b32 s{S_U1}, s{S_U1}, 16")
        k(f"s_add_u32 s{S_U1}, s{S_U1}, 1")
        k(f"v_mov_b32 v{V_T0}, s{S_U1}")
        k("s_mov_b64 exec, 1")
        k(f"buffer_atomic_add v{V_T0}, v{V_L16}, {DBG}, {4 * DBG_INIT} offen")
        k("s_mov_b64 exec, -1")
        k(f"{skip}:")

    def phase_aqkv(self, ch, claim):
        k = self.k
        k(f"s_load_dwordx2 {sr(S_U0, 2)}, s[0:1], 16")
        k(f"s_load_dwordx2 {sr(S_U2, 2)}, s[0:1], 24")
        k(f"s_load_dwordx2 {sr(S_TA, 2)}, s[0:1], 32")
        self.srd(S_X, 0, 2048 * 1280)
        k(f"s_mov_b32 s{S_T0}, s{S_CG}")
        k(f"s_cmp_lt_u32 s{S_W}, 2")
        k(f"s_cselect_b32 s{S_WT}, s{S_U2}, s{S_TA}")
        k(f"s_cselect_b32 s{S_WT + 1}, s{S_U2 + 1}, s{S_TA + 1}")
        k(f"s_cselect_b32 s{S_SEG}, 0, 1")
        k(f"s_cmp_lt_u32 s{S_T0}, 32")
        k(f"s_cselect_b32 s{S_WT}, s{S_WT}, s{S_U0}")
        k(f"s_cselect_b32 s{S_WT + 1}, s{S_WT + 1}, s{S_U0 + 1}")
        k(f"s_cselect_b32 s{S_SEG}, s{S_SEG}, 0")
        k(f"s_cselect_b32 s{S_M}, {fbits(math.log2(math.e) / math.sqrt(128.0)):#x}, 1.0")
        k(f"s_mov_b32 s{S_M + 1}, s{S_M}")
        k(f"s_mov_b32 s{S_WT + 2}, {640 * 8192}")
        k(f"s_mov_b32 s{S_WT + 3}, 0x20000")
        k(f"s_and_b32 s{S_T1}, s{S_W}, 1")
        k(f"s_lshl_b32 s{S_T1}, s{S_T1}, 7")
        k(f"s_lshl_b32 s{S_T2}, s{S_T0}, 8")
        k(f"s_add_u32 s{S_T1}, s{S_T1}, s{S_T2}")
        k(f"s_sub_u32 s{S_T2}, s{S_T0}, 32")
        k(f"s_lshl_b32 s{S_T2}, s{S_T2}, 2")
        k(f"s_add_u32 s{S_T2}, s{S_T2}, s{S_W}")
        k(f"s_lshl_b32 s{S_T3}, s{S_T2}, 7")
        k(f"s_cmp_lt_u32 s{S_T0}, 32")
        k(f"s_cselect_b32 s{S_WB}, s{S_T1}, s{S_T3}")
        k(f"s_lshl_b32 s{S_T2}, s{S_T2}, 12")
        k(f"s_add_u32 s{S_T2}, s{S_T2}, {WS_QX}")
        k(f"s_lshl_b32 s{S_T1}, s{S_T0}, 2")
        k(f"s_add_u32 s{S_T1}, s{S_T1}, s{S_W}")
        k(f"s_lshl_b32 s{S_T1}, s{S_T1}, 12")
        k(f"s_add_u32 s{S_T1}, s{S_T1}, {WS_KV}")
        k(f"s_cmp_lt_u32 s{S_T0}, 32")
        k(f"s_cselect_b32 s{S_OO}, s{S_T1}, s{S_T2}")
        k(f"s_cselect_b32 s{S_T3}, 19, 18")
        k(f"s_lshl_b32 s{S_T2}, s{S_TG}, s{S_T3}")
        k(f"s_add_u32 s{S_OO}, s{S_OO}, s{S_T2}")
        k(f"s_lshl_b32 s{S_OST}, 3, s{S_T3}")
        k(f"s_mul_i32 s{S_XO}, s{S_TG}, 40960")
        k(f"s_mov_b32 s{S_XST}, {3 * 40960}")
        k(f"s_cmp_eq_u32 s{S_TG}, 0")
        k(f"s_cselect_b32 s{S_N}, 22, 21")
        k(f"v_lshrrev_b32 v{V_T0}, 3, v{V_LANE}")
        k(f"v_lshlrev_b32 v{V_T0}, 13, v{V_T0}")
        k(f"v_lshrrev_b32 v{V_T1}, 2, v{V_LANE}")
        k(f"v_and_b32 v{V_T1}, 4, v{V_T1}")
        k(f"v_xor_b32 v{V_T1}, v{V_T1}, v{V_LANE}")
        k(f"v_and_b32 v{V_T1}, 7, v{V_T1}")
        k(f"v_lshl_add_u32 v{V_S0}, v{V_T1}, 4, v{V_T0}")

        def first():
            claim()
            k(f"v_lshrrev_b32 v{V_T0}, 5, v{V_LANE}")
            k(f"v_lshlrev_b32 v{V_T0}, 10, v{V_T0}")
            k(f"v_bfe_u32 v{V_T1}, v{V_LANE}, 2, 2")
            k(f"v_lshl_add_u32 v{V_T0}, v{V_T1}, 7, v{V_T0}")
            k(f"v_bfe_u32 v{V_T1}, v{V_LANE}, 3, 1")
            k(f"v_lshl_add_u32 v{V_T0}, v{V_T1}, 6, v{V_T0}")
            k(f"v_bfe_u32 v{V_T1}, v{V_LANE}, 4, 1")
            k(f"v_lshl_add_u32 v{V_T0}, v{V_T1}, 5, v{V_T0}")
            k(f"v_and_b32 v{V_T1}, 3, v{V_LANE}")
            k(f"v_lshl_add_u32 v{V_T0}, v{V_T1}, 3, v{V_T0}")
            k(f"v_add_u32 v{V_TR}, s{S_RING}, v{V_T0}")
            k(f"v_xor_b32 v{V_S1}, 64, v{V_TR}")
            self.x_consts(False)
            self.mark(0)
            self.init_flags(True)

        self.load_weights([(V_S0, (ks * 16 + 8 * T) * 8192, WREG + 4 * (T * 40 + ks)) for ks in range(40) for T in range(2)], lines=True, first=first)
        self.report_init(ch)
        k("s_barrier")
        if self.opt.get("noworkers"):
            k("s_endpgm")
        self.mark(1)
        self.gemm_prologue(False)
        lv, le = k.label("aq_v"), k.label("aq_e")
        k(f"s_cmp_eq_u32 s{S_SEG}, 1")
        k(f"s_cbranch_scc1 {lv}")
        self.gemm_loop("qk")
        k(f"s_branch {le}")
        k(f"{lv}:")
        self.gemm_loop("v")
        k(f"{le}:")
        self.gemm_finish()
        k(f"s_mov_b32 s{S_FL}, {OOB:#x}")

    def phase_bqkv(self, ch, claim):
        k = self.k
        k("; ---- sliding-window branch: q, k, v")
        self.srd(S_X, 56, 2048 * 1280)
        self.srd(S_WT, 64, 640 * 3840)
        k(f"s_lshl_b32 s{S_T1}, s{S_CG}, 2")
        k(f"s_add_u32 s{S_T1}, s{S_T1}, s{S_W}")
        k(f"s_mul_i32 s{S_WB}, s{S_T1}, 80")
        k(f"s_lshr_b32 s{S_SEG}, s{S_CG}, 2")
        k(f"s_and_b32 s{S_T1}, s{S_T1}, 15")
        k(f"s_mul_i32 s{S_XO}, s{S_TG}, 40960")
        k(f"s_mov_b32 s{S_XST}, {4 * 40960}")
        k(f"s_mov_b32 s{S_N}, 16")
        k(f"s_lshl_b32 s{S_T2}, s{S_TG}, 4")
        k(f"s_add_u32 s{S_T1}, s{S_T1}, s{S_T2}")
        k(f"s_mul_i32 s{S_T2}, s{S_T1}, 2560")
        k(f"s_mul_i32 s{S_T3}, s{S_SEG}, {3 * MB}")
        k(f"s_add_u32 s{S_T2}, s{S_T2}, s{S_T3}")
        k(f"s_add_u32 s{S_T2}, s{S_T2}, {WS_BQK}")
        k(f"s_lshl_b32 s{S_T1}, s{S_T1}, 12")
        k(f"s_add_u32 s{S_T1}, s{S_T1}, {WS_BV}")
        k(f"s_mov_b32 s{S_OST}, {4 * 32 * 1280}")
        k(f"s_cmp_eq_u32 s{S_SEG}, 1")
        k(f"s_cselect_b32 s{S_M}, {fbits(math.log2(math.e) / math.sqrt(20.0)):#x}, 1.0")
        k(f"s_cmp_eq_u32 s{S_SEG}, 2")
        k(f"s_cselect_b32 s{S_OO}, s{S_T1}, s{S_T2}")
        k(f"s_cselect_b32 s{S_OST}, {4 * 32 * 2048}, s{S_OST}")
        k(f"s_cselect_b32 s{S_M}, 0xfff00000, s{S_M}")
        k(f"s_mov_b32 s{S_M + 1}, s{S_M}")
        self.src_rows(V_S0, 3840, "id")

        def first():
            claim()
            k(f"v_mov_b32 v{V_O1}, 0x3f803f80")
            k(f"v_lshlrev_b32 v{V_T0}, 3, v{V_LANE}")
            k(f"v_and_b32 v{V_T1}, 32, v{V_LANE}")
            k(f"v_lshl_add_u32 v{V_O0}, v{V_T1}, 25, v{V_T0}")
            self.tr_addr("clamp")
            self.x_consts(False)
            self.mark(0)
            self.init_flags(False)

        self.load_weights([(V_S0, ks * 16 * 3840 + 40 * T, WREG + 4 * (T * 40 + ks)) for ks in range(40) for T in range(2)], first=first)
        self.report_init(ch)
        k("s_barrier")
        if self.opt.get("noworkers"):
            k("s_endpgm")
        self.mark(3)
        self.gemm_prologue(False)
        lv, le = k.label("bq_v"), k.label("bq_e")
        k(f"s_cmp_eq_u32 s{S_SEG}, 2")
        k(f"s_cbranch_scc1 {lv}")
        self.gemm_loop("bqk")
        k(f"s_branch {le}")
        k(f"{lv}:")
        self.gemm_loop("bv")
        k(f"{le}:")

    def out_addr(self, dst):
        k = self.k
        k(f"v_and_b32 v{V_T0}, 31, v{V_LANE}")
        k(f"v_mul_u32_u24 v{V_T0}, 2560, v{V_T0}")
        k(f"v_and_b32 v{V_T1}, 32, v{V_LANE}")
        k(f"v_add_u32 v{dst}, v{V_T0}, v{V_T1}")

    def phase_bout_load(self):
        k = self.k
        k("; ---- sliding-window branch: output projection")
        self.srd(S_WT, 72, 640 * 1280)
        k(f"s_lshr_b32 s{S_T0}, s{S_G}, 4")
        k(f"s_lshl_b32 s{S_T0}, s{S_T0}, 2")
        k(f"s_add_u32 s{S_T0}, s{S_T0}, s{S_W}")
        k(f"s_lshl_b32 s{S_WB}, s{S_T0}, 7")
        k(f"s_and_b32 s{S_T1}, s{S_G}, 15")
        k(f"s_mul_i32 s{S_XO}, s{S_T1}, 40960")
        k(f"s_add_u32 s{S_XO}, s{S_XO}, {WS_BO}")
        k(f"s_mul_i32 s{S_T1}, s{S_T1}, {32 * 2560}")
        k(f"s_add_u32 s{S_T1}, s{S_T1}, s{S_WB}")
        k(f"s_add_u32 s{S_T1}, s{S_T1}, 1280")
        k(f"s_cmp_lt_u32 s{S_T0}, 10")
        k(f"s_cselect_b32 s{S_OO}, s{S_T1}, {OOB:#x}")
        k(f"s_mov_b32 s{S_OST}, {16 * 32 * 2560}")
        k(f"s_mov_b32 s{S_XST}, {16 * 40960}")
        k(f"s_mov_b32 s{S_N}, 4")
        self.out_addr(V_O0)
        self.tr_addr("wide")
        self.src_rows(V_S0, 1280, "perm")
        self.src_rows(V_S1, 1280, "last")
        self.x_consts(True)
        fr = []
        for ks in range(40):
            hq, n = divmod(ks, 5)
            for T in range(2):
                fr.append((V_S0 if n < 4 else V_S1, (80 * hq + (20 * n if n < 4 else 0)) * 1280 + 64 * T, WREG + 4 * (T * 40 + ks)))
        self.load_weights(fr)

    def phase_bout(self):
        self.gemm_prologue(True)
        self.gemm_loop("out")

    def bias_tile(self, dst, op):
        k = self.k
        k(f"v_and_b32 v{V_T0}, 31, v{V_LANE}")
        k(f"v_lshrrev_b32 v{V_T1}, 5, v{V_LANE}")
        k(f"v_lshlrev_b32 v{V_T1}, 2, v{V_T1}")
        k(f"v_sub_u32 v{V_T0}, v{V_T0}, v{V_T1}")
        k(f"v_mov_b32 v{V_T1}, {NEG:#x}")
        for i in range(16):
            k(f"v_cmp_{op}_i32 vcc, {8 * (i >> 2) + (i & 3)}, v{V_T0}")
            k(f"v_cndmask_b32 v{dst + i}, v{V_T1}, 0, vcc")

    def pack_p(self, dst, D):
        k = self.k
        for u in range(2):
            for n, (lo, hi) in enumerate(((2 * u, 4 + 2 * u), (8 + 2 * u, 12 + 2 * u), (2 * u + 1, 5 + 2 * u), (9 + 2 * u, 13 + 2 * u))):
                k(f"v_cvt_pk_bf16_f32 v{dst + 4 * u + n}, v{D + lo}, v{D + hi}")

    def half_reduce(self, op, r, t):
        k = self.k
        k(f"v_mov_b32 v{t}, v{r}")
        k(f"v_permlane32_swap_b32 v{r}, v{t}")
        k(f"v_{op}_f32 v{r}, v{r}, v{t}")

    def phase_battn(self):
        k = self.k
        k("; ---- sliding-window attention: one segment x four heads per wave")
        S, BC, BW, O, Q, PK, OP = 20, 164, 180, 196, [212, 218], [224, 232], 240
        VA, VB = V_S0, V_S1
        k(f"v_lshlrev_b32 v{V_T0}, 3, v{V_LANE}")
        k(f"v_and_b32 v{V_T1}, 32, v{V_LANE}")
        k(f"v_lshl_add_u32 v{VA}, v{V_T1}, 25, v{V_T0}")
        k(f"v_and_b32 v{V_T0}, 31, v{V_LANE}")
        k(f"v_subrev_u32 v{V_T2}, 4, v{V_T0}")
        k(f"v_cmp_gt_u32 vcc, 20, v{V_T0}")
        k(f"v_cndmask_b32 v{V_T0}, v{V_T2}, v{V_T0}, vcc")
        k(f"v_add_u32 v{V_T0}, v{V_T0}, v{V_T1}")
        k(f"v_lshlrev_b32 v{VB}, 4, v{V_T0}")
        self.bias_tile(BC, "le")
        self.bias_tile(BW, "gt")
        k(f"s_mov_b32 s{S_M}, 0")
        k(f"s_mov_b32 s{S_M + 1}, -1")

        def areg(b, j, what):
            base = 126 * b + 14 * j
            return base + {"k0": 0, "k1": 4, "v0": 6, "v1": 10}[what]

        def loads(n):
            b = n & 1
            k(f"s_mul_i32 s{S_T0}, s{S_BLK + 8}, 1280")
            k(f"s_add_u32 s{S_T0}, s{S_T0}, {WS_BQK + 1280 * n}")
            k(f"buffer_load_dwordx4 {vr(Q[b], 4)}, v{V_L16}, {WS}, s{S_T0} offen sc1")
            k(f"buffer_load_dwordx2 {vr(Q[b] + 4, 2)}, v{VA}, {WS}, s{S_T0} offen offset:1024 sc1")
            for j in range(9):
                k(f"s_mul_i32 s{S_T0}, s{S_BLK + j}, 1280")
                k(f"s_add_u32 s{S_T0}, s{S_T0}, {WS_BQK + 3 * MB + 1280 * n}")
                k(f"buffer_load_dwordx4 {ar(areg(b, j, 'k0'), 4)}, v{V_L16}, {WS}, s{S_T0} offen sc1")
                k(f"buffer_load_dwordx2 {ar(areg(b, j, 'k1'), 2)}, v{VA}, {WS}, s{S_T0} offen offset:1024 sc1")
            for j in range(9):
                k(f"s_lshl_b32 s{S_T0}, s{S_BLK + j}, 11")
                k(f"s_add_u32 s{S_T0}, s{S_T0}, {WS_BV + 2048 * n}")
                k(f"buffer_load_dwordx4 {ar(areg(b, j, 'v0'), 4)}, v{VB}, {WS}, s{S_T0} offen sc1")
                k(f"buffer_load_dwordx4 {ar(areg(b, j, 'v1'), 4)}, v{VB}, {WS}, s{S_T0} offen offset:1024 sc1")

        k(f"s_mov_b32 s{S_IT}, s{S_G}")
        again = k.label("battn")
        k(f"{again}:")
        k(f"s_lshr_b32 s{S_SEG}, s{S_IT}, 3")
        k(f"s_lshl_b32 s{S_SEG}, s{S_SEG}, 2")
        k(f"s_add_u32 s{S_SEG}, s{S_SEG}, s{S_W}")
        k(f"s_and_b32 s{S_U3}, s{S_IT}, 7")
        for j in range(9):
            k(f"s_add_i32 s{S_T0}, s{S_SEG}, {j - 8}")
            k(f"s_lshl_b32 s{S_T1}, s{S_T0}, 3")
            k(f"s_add_u32 s{S_T1}, s{S_T1}, s{S_U3}")
            k(f"s_lshl_b32 s{S_T1}, s{S_T1}, 2")
            k(f"s_cmp_ge_i32 s{S_T0}, 0")
            k(f"s_cselect_b32 s{S_BLK + j}, s{S_T1}, 0x100000")
        k(f"s_mul_i32 s{S_OO}, s{S_SEG}, 40960")
        k(f"s_mul_i32 s{S_T0}, s{S_U3}, 5120")
        k(f"s_add_u32 s{S_OO}, s{S_OO}, s{S_T0}")
        k(f"s_add_u32 s{S_OO}, s{S_OO}, {WS_BO}")
        loads(0)
        for n in range(4):
            b = n & 1
            k(f"s_waitcnt vmcnt({1 if n else 0})")
            if n < 3:
                loads(n + 1)
            for j in range(9):
                c = vr(BW, 16) if j == 0 else vr(BC, 16) if j == 8 else "0"
                k(f"v_mfma_f32_32x32x16_bf16 {vr(S + 16 * j, 16)}, {ar(areg(b, j, 'k0'), 4)}, {vr(Q[b], 4)}, {c}")
                k(f"v_mfma_f32_32x32x8_bf16 {vr(S + 16 * j, 16)}, {ar(areg(b, j, 'k1'), 2)}, {vr(Q[b] + 4, 2)}, {vr(S + 16 * j, 16)}")
            full = k.label("full")
            for j in range(8):
                k(f"s_cmp_ge_u32 s{S_SEG}, {8 - j}")
                k(f"s_cbranch_scc1 {full}")
                for i in range(16):
                    k(f"v_mov_b32 v{S + 16 * j + i}, {NEG:#x}")
            k(f"{full}:")
            k(f"v_max_f32 v{V_T0}, v{S}, v{S + 1}")
            for i in range(2, 144, 2):
                k(f"v_max3_f32 v{V_T0}, v{V_T0}, v{S + i}, v{S + i + 1}")
            self.half_reduce("max", V_T0, V_T1)
            for j in range(9):
                D = S + 16 * j
                for i in range(16):
                    k(f"v_sub_f32 v{D + i}, v{D + i}, v{V_T0}")
                for i in range(16):
                    k(f"v_exp_f32 v{D + i}, v{D + i}")
                self.pack_p(PK[j & 1], D)
                for u in range(2):
                    c = "0" if j == 0 and u == 0 else vr(O, 16)
                    k(f"v_mfma_f32_32x32x16_bf16 {vr(O, 16)}, {ar(areg(b, j, 'v%d' % u), 4)}, {vr(PK[j & 1] + 4 * u, 4)}, {c}")
            k(f"v_rcp_f32 v{V_T0}, v{O + 12}")
            for i in range(12):
                k(f"v_mul_f32 v{O + i}, v{O + i}, v{V_T0}")
            for i in range(4):
                k(f"v_cvt_pk_bf16_f32 v{OP + i}, v{O + 2 * i}, v{O + 2 * i + 1}")
            X = OP + 4 + 2 * (n >> 1)
            if n & 1 == 0:
                k(f"v_cvt_pk_bf16_f32 v{X}, v{O + 8}, v{O + 9}")
                k(f"v_cvt_pk_bf16_f32 v{X + 1}, v{O + 10}, v{O + 11}")
            else:
                k(f"s_mov_b64 exec, {sr(S_M, 2)}")
                k(f"v_cvt_pk_bf16_f32 v{X}, v{O + 8}, v{O + 9}")
                k(f"v_cvt_pk_bf16_f32 v{X + 1}, v{O + 10}, v{O + 11}")
                k("s_mov_b64 exec, -1")
            k(f"buffer_store_dwordx4 {vr(OP, 4)}, v{V_L16}, {WS}, s{S_OO} offen offset:{1024 * n} sc1")
        k(f"s_add_u32 s{S_OO}, s{S_OO}, 4096")
        k(f"buffer_store_dwordx4 {vr(OP + 4, 4)}, v{V_L16}, {WS}, s{S_OO} offen sc1")
        k(f"s_add_u32 s{S_IT}, s{S_IT}, 48")
        k(f"s_cmp_lt_u32 s{S_IT}, 128")
        k(f"s_cbranch_scc1 {again}")

    def phase_ao(self):
        k = self.k
        k("; ---- token attention and output projection of the recurrent branch")
        self.srd(S_WT, 40, 4096 * 1280)
        k(f"s_mul_i32 s{S_WB}, s{S_J}, {256 * 1280}")
        k(f"s_mul_i32 s{S_T0}, s{S_W}, 320")
        k(f"s_add_u32 s{S_WB}, s{S_WB}, s{S_T0}")
        self.tr_addr("wide")
        self.src_rows(V_S0, 1280, "perm")
        self.load_weights([(V_S0, ks * 16 * 1280 + 64 * T, WREG + 4 * (T * 16 + ks)) for ks in range(16) for T in range(5)])
        VM, ID, VKM, VVM, VOW = 2, 6, 10, 11, 12
        Q, K, V, BC = 20, 52, 84, 176
        SX, SM, O, PK = 112, 128, 144, 100
        self.out_addr(V_O0)
        k(f"v_and_b32 v{V_T0}, 31, v{V_LANE}")
        k(f"v_and_b32 v{V_T1}, 32, v{V_LANE}")
        k(f"v_lshlrev_b32 v{V_T2}, 4, v{V_T0}")
        k(f"v_lshl_add_u32 v{V_T3}, v{V_T1}, 2, v{V_T2}")
        k(f"v_cmp_gt_u32 vcc, 8, v{V_T0}")
        k(f"v_mov_b32 v{VKM}, 0x40000000")
        k(f"v_cndmask_b32 v{VKM}, v{VKM}, v{V_T3}, vcc")
        k(f"v_lshrrev_b32 v{V_T1}, 2, v{V_T1}")
        k(f"v_add_u32 v{VVM}, v{V_T1}, v{V_T2}")
        k(f"s_lshl_b32 s{S_T0}, s{S_W}, 12")
        k(f"v_add_u32 v{VOW}, s{S_T0}, v{V_L16}")
        k(f"v_lshrrev_b32 v{V_T1}, 3, v{V_LANE}")
        k(f"v_xor_b32 v{V_T1}, v{V_T1}, v{V_LANE}")
        k(f"v_and_b32 v{V_T1}, 4, v{V_T1}")
        k(f"v_and_or_b32 v{V_T1}, v{V_LANE}, 16, v{V_T1}")
        k(f"v_bfe_u32 v{V_T2}, v{V_LANE}, 3, 1")
        k(f"v_bfe_u32 v{V_T3}, v{V_LANE}, 1, 1")
        k(f"v_lshl_add_u32 v{V_T2}, v{V_T2}, 1, v{V_T3}")
        k(f"v_add_u32 v{V_T1}, v{V_T1}, v{V_T2}")
        k(f"v_and_b32 v{V_T2}, 1, v{V_LANE}")
        k(f"v_lshlrev_b32 v{V_T2}, 4, v{V_T2}")
        k(f"v_mov_b32 v{V_T3}, 0x3f80")
        k(f"v_lshlrev_b32 v{V_T2}, v{V_T2}, v{V_T3}")
        for i in range(4):
            k(f"v_cmp_eq_u32 vcc, {i}, v{V_T1}")
            k(f"v_cndmask_b32 v{ID + i}, 0, v{V_T2}, vcc")
        k(f"s_lshr_b32 s{S_SEG}, s{S_G}, 4")
        k(f"s_mov_b32 s{S_WANT}, 0")
        k(f"s_lshl_b32 s{S_FL}, s{S_J}, 7")
        k(f"s_add_u32 s{S_FL}, s{S_FL}, {FL_CHAIN}")
        k(f"s_and_b32 s{S_U2}, s{S_W}, 1")
        self.poll(DBG, 4 * DBG_INIT, 192, mask=0xffff)
        self.poll(DBG, 4 * DBG_BARA, 144)

        def block(seg, dst):
            k(f"s_lshl_b32 s{dst}, s{seg}, 4")
            k(f"s_add_u32 s{dst}, s{dst}, s{S_J}")
            k(f"s_lshl_b32 s{dst}, s{dst}, 1")
            k(f"s_lshr_b32 s{S_T1}, s{S_W}, 1")
            k(f"s_add_u32 s{dst}, s{dst}, s{S_T1}")

        def qkv_loads():
            g = [[f"s_lshl_b32 s{S_XO}, s{S_U3}, 13", f"s_add_u32 s{S_XO}, s{S_XO}, {WS_QX}",
                  f"s_lshl_b32 s{S_XST}, s{S_U3}, 14", f"s_add_u32 s{S_XST}, s{S_XST}, {WS_KV}",
                  f"s_cmp_lt_u32 s{S_U3}, 2048", f"s_cselect_b32 s{S_XO}, s{S_XO}, {OOB:#x}", f"s_cselect_b32 s{S_XST}, s{S_XST}, {OOB:#x}"]]
            for f in range(8):
                pre = [f"s_add_u32 s{S_XO}, s{S_XO}, 4096", f"s_add_u32 s{S_XST}, s{S_XST}, 4096"] if f == 4 else []
                g.append(pre + [f"buffer_load_dwordx4 {vr(Q + 4 * f, 4)}, v{V_L16}, {WS}, s{S_XO} offen offset:{1024 * (f & 3)} sc1"])
                g.append([f"buffer_load_dwordx4 {vr(K + 4 * f, 4)}, v{V_L16}, {WS}, s{S_XST} offen offset:{1024 * (f & 3)} sc1"])
            for f in range(4):
                pre = [f"s_lshl_b32 s{S_T1}, s{S_U2}, 12", f"s_add_u32 s{S_XST}, s{S_XST}, s{S_T1}", f"s_add_u32 s{S_XST}, s{S_XST}, 4096"] if f == 0 else []
                g.append(pre + [f"buffer_load_dwordx4 {vr(V + 4 * f, 4)}, v{V_L16}, {WS}, s{S_XST} offen offset:{1024 * f} sc1"])
            return g

        block(S_SEG, S_U3)
        for g in qkv_loads():
            for x in g: k(x)
        k("s_waitcnt vmcnt(0)")
        self.mark(9)
        top = k.label("ao")
        k(f"{top}:")
        k(f"s_mov_b32 s{S_U0}, s{S_U3}")
        self.bias_tile(BC, "le")
        for f in range(8):
            c = vr(BC, 16) if f == 0 else vr(SX, 16)
            k(f"v_mfma_f32_32x32x16_bf16 {vr(SX, 16)}, {vr(K + 4 * f, 4)}, {vr(Q + 4 * f, 4)}, {c}")
        k(f"s_add_u32 s{S_T2}, s{S_SEG}, 1")
        self.poll(WS, f"s{S_FL}", f"s{S_T2}", nd=4, sh=4)
        self.mark(11, False)
        k(f"s_lshl_b32 s{S_T0}, s{S_U0}, 11")
        k(f"s_add_u32 s{S_T1}, s{S_T0}, {WS_VM}")
        k(f"s_add_u32 s{S_T0}, s{S_T0}, {WS_KM}")
        k(f"s_lshl_b32 s{S_T2}, s{S_U2}, 10")
        k(f"s_add_u32 s{S_T1}, s{S_T1}, s{S_T2}")
        for f in range(8):
            k(f"buffer_load_dwordx4 {vr(K + 4 * f, 4)}, v{VKM}, {WS}, s{S_T0} offen offset:{256 * f} sc1")
        for t in range(2):
            k(f"buffer_load_dwordx2 {vr(VM + 2 * t, 2)}, v{VVM}, {WS}, s{S_T1} offen offset:{512 * t} sc1")
        k(f"v_max_f32 v{V_T0}, v{SX}, v{SX + 1}")
        for i in range(2, 16, 2):
            k(f"v_max3_f32 v{V_T0}, v{V_T0}, v{SX + i}, v{SX + i + 1}")
        for f in range(8):
            k(f"s_waitcnt vmcnt({9 - f})")
            c = "0" if f == 0 else vr(SM, 16)
            k(f"v_mfma_f32_32x32x16_bf16 {vr(SM, 16)}, {vr(K + 4 * f, 4)}, {vr(Q + 4 * f, 4)}, {c}")
        for i in range(4):
            k(f"v_mul_f32 v{SM + i}, {fbits(math.log2(math.e) / math.sqrt(128.0)):#x}, v{SM + i}")
        k(f"v_max3_f32 v{V_T0}, v{V_T0}, v{SM}, v{SM + 1}")
        k(f"v_max3_f32 v{V_T0}, v{V_T0}, v{SM + 2}, v{SM + 3}")
        self.half_reduce("max", V_T0, V_T1)
        for i in range(20):
            k(f"v_sub_f32 v{SX + i}, v{SX + i}, v{V_T0}")
        for i in range(20):
            k(f"v_exp_f32 v{SX + i}, v{SX + i}")
        self.pack_p(PK, SX)
        k(f"v_cvt_pk_bf16_f32 v{PK + 8}, v{SM}, v{SM + 1}")
        k(f"v_cvt_pk_bf16_f32 v{PK + 9}, v{SM + 2}, v{SM + 3}")
        k("s_waitcnt vmcnt(0)")
        adds = [f"v_add_f32 v{V_T0}, v{SX}, v{SX + 1}"] + [f"v_add_f32 v{V_T0}, v{V_T0}, v{SX + i}" for i in range(2, 20)]
        for t in range(2):
            for u in range(3):
                if u < 2:
                    c = "0" if u == 0 else vr(O + 16 * t, 16)
                    k(f"v_mfma_f32_32x32x16_bf16 {vr(O + 16 * t, 16)}, {vr(V + 8 * t + 4 * u, 4)}, {vr(PK + 4 * u, 4)}, {c}")
                else:
                    k(f"v_mfma_f32_32x32x8_bf16 {vr(O + 16 * t, 16)}, {vr(VM + 2 * t, 2)}, {vr(PK + 8, 2)}, {vr(O + 16 * t, 16)}")
                for _ in range(5):
                    if adds: k(adds.pop(0))
        self.half_reduce("add", V_T0, V_T1)
        k(f"v_rcp_f32 v{V_T0}, v{V_T0}")
        for g in range(4):
            for i in range(8):
                k(f"v_mul_f32 v{O + 8 * g + i}, v{O + 8 * g + i}, v{V_T0}")
            for i in range(4):
                k(f"v_cvt_pk_bf16_f32 v{Q + 4 * g + i}, v{O + 8 * g + 2 * i}, v{O + 8 * g + 2 * i + 1}")
            k(f"ds_write_b128 v{VOW}, {vr(Q + 4 * g, 4)} offset:{1024 * g}")
        k("s_waitcnt lgkmcnt(0)")
        k("s_barrier")
        self.mark(12, False)
        XF, ACC, PP = 160, [112, 128], [144, 152]
        rd = lambda n: k(f"ds_read_b128 {vr(XF + 4 * (n % 4), 4)}, v{V_L16} offset:{1024 * (n % 16)}")
        for n in range(3):
            rd(n)
        k(f"s_add_u32 s{S_T2}, s{S_SEG}, 9")
        block(S_T2, S_U3)
        k(f"s_lshr_b32 s{S_T0}, s{S_U0}, 1")
        k(f"s_mul_i32 s{S_T0}, s{S_T0}, 40960")
        k(f"s_mul_i32 s{S_T1}, s{S_W}, 10240")
        k(f"s_add_u32 s{S_T0}, s{S_T0}, s{S_T1}")
        k(f"s_add_u32 s{S_T0}, s{S_T0}, {WS_PART}")
        loads = qkv_loads()

        def finish(T):
            D, P = ACC[T & 1], PP[T & 1]
            g = [[f"v_cvt_pk_bf16_f32 v{P + i}, v{D + 2 * i}, v{D + 2 * i + 1}" for i in range(4 * u, 4 * u + 4)] for u in range(2)]
            g += [[f"buffer_store_dwordx4 {vr(P + 4 * u, 4)}, v{V_L16}, {WS}, s{S_T0} offen offset:{1024 * u} sc1"] for u in range(2)]
            g[-1].append(f"s_add_u32 s{S_T0}, s{S_T0}, 2048")
            return g

        pend = []
        for n in range(80):
            T, ks = divmod(n, 16)
            k(f"s_waitcnt lgkmcnt({min(2, 79 - n)})")
            c = "0" if ks == 0 else vr(ACC[T & 1], 16)
            k(f"v_mfma_f32_32x32x16_bf16 {vr(ACC[T & 1], 16)}, {ur(WREG + 4 * n, 4)}, {vr(XF + 4 * (n % 4), 4)}, {c}")
            if n + 3 < 80:
                rd(n + 3)
            if ks in (4, 5, 8, 12) and pend:
                for x in pend.pop(0): k(x)
            elif ks in (0, 2, 6, 10, 14) or T == 0:
                if loads and (T > 0 or ks % 2 == 0):
                    for x in loads.pop(0): k(x)
            if ks == 15:
                pend = finish(T)
        assert not loads
        for g in pend:
            for x in g: k(x)
        self.mark(13, False)
        self.arrive(WS, f"s{S_TEAM}")
        self.mark(14, False)
        k(f"s_add_u32 s{S_WANT}, s{S_WANT}, 16")
        nored = k.label("ao_nored")
        self.poll(WS, f"s{S_TEAM}", f"s{S_WANT}")
        self.mark(15, False)
        k(f"s_lshl_b32 s{S_T2}, s{S_W}, 4")
        k(f"s_add_u32 s{S_T2}, s{S_T2}, s{S_J}")
        k(f"s_cmp_ge_u32 s{S_T2}, 40")
        k(f"s_cbranch_scc1 {nored}")
        k(f"s_mul_i32 s{S_T0}, s{S_SEG}, {16 * 40960}")
        k(f"s_lshl_b32 s{S_T1}, s{S_T2}, 10")
        k(f"s_add_u32 s{S_T0}, s{S_T0}, s{S_T1}")
        k(f"s_add_u32 s{S_T0}, s{S_T0}, {WS_PART}")
        for p in range(16):
            k(f"buffer_load_dwordx4 {vr(112 + 4 * p, 4)}, v{V_L16}, {WS}, s{S_T0} offen sc1")
            k(f"s_add_u32 s{S_T0}, s{S_T0}, 40960")
        k(f"s_lshr_b32 s{S_T0}, s{S_T2}, 1")
        k(f"s_lshl_b32 s{S_T0}, s{S_T0}, 6")
        k(f"s_and_b32 s{S_T1}, s{S_T2}, 1")
        k(f"s_lshl_b32 s{S_T1}, s{S_T1}, 4")
        k(f"s_add_u32 s{S_T0}, s{S_T0}, s{S_T1}")
        k(f"s_mul_i32 s{S_T1}, s{S_SEG}, {32 * 2560}")
        k(f"s_add_u32 s{S_T0}, s{S_T0}, s{S_T1}")
        for p in range(16):
            k(f"s_waitcnt vmcnt({15 - p})")
            c = "0" if p == 0 else vr(176, 16)
            k(f"v_mfma_f32_32x32x16_bf16 {vr(176, 16)}, {vr(ID, 4)}, {vr(112 + 4 * p, 4)}, {c}")
        for i in range(4):
            k(f"v_cvt_pk_bf16_f32 v{PK + i}, v{176 + 2 * i}, v{176 + 2 * i + 1}")
        k(f"buffer_store_dwordx4 {vr(PK, 4)}, v{V_O0}, {OUT}, s{S_T0} offen")
        k(f"{nored}:")
        k(f"s_add_u32 s{S_SEG}, s{S_SEG}, 9")
        k(f"s_cmp_lt_u32 s{S_SEG}, 64")
        k(f"s_cbranch_scc1 {top}")

    def mark(self, i, store=True):
        if not self.timing:
            return
        k = self.k
        if not store:
            k(f"s_memrealtime {sr(54 + 2 * (i - 11), 2)}")
            k("s_waitcnt lgkmcnt(0)")
            return
        if i == 10:
            k("s_waitcnt vmcnt(0)")
            for j in range(11, 16):
                k(f"v_mov_b32 v{V_T0}, s{54 + 2 * (j - 11)}")
                k(f"s_lshl_b32 s{S_T0}, s3, 6")
                k(f"s_add_u32 s{S_T0}, s{S_T0}, {WS_STAMP + 65536 + 4 * j}")
                k("s_mov_b64 exec, 1")
                k(f"buffer_store_dword v{V_T0}, v{V_L16}, {WS}, s{S_T0} offen")
                k("s_mov_b64 exec, -1")
        if i == 1:
            k("s_memtime s[68:69]")
        if i == 2:
            k("s_memtime s[70:71]")
            k("s_waitcnt lgkmcnt(0)")
            k("s_sub_u32 s70, s70, s68")
            k(f"v_mov_b32 v{V_T0}, s70")
            k(f"s_lshl_b32 s{S_T0}, s3, 6")
            k(f"s_add_u32 s{S_T0}, s{S_T0}, {WS_STAMP + 65536 + 4 * 3}")
            k("s_mov_b64 exec, 1")
            k(f"buffer_store_dword v{V_T0}, v{V_L16}, {WS}, s{S_T0} offen")
            k("s_mov_b64 exec, -1")
        if i == 0:
            k(f"s_mov_b32 s{S_TA}, s78")
        else:
            k(f"s_memrealtime {sr(S_TA, 2)}")
            k("s_waitcnt lgkmcnt(0)")
        k(f"v_mov_b32 v{V_T0}, s{S_TA}")
        k(f"s_lshl_b32 s{S_T0}, s3, 6")
        k(f"s_add_u32 s{S_T0}, s{S_T0}, {WS_STAMP + 65536 + 4 * i}")
        k("s_mov_b64 exec, 1")
        k(f"buffer_store_dword v{V_T0}, v{V_L16}, {WS}, s{S_T0} offen")
        k("s_mov_b64 exec, -1")
        k("s_waitcnt vmcnt(0)")

    def program(self, ch, claim):
        k = self.k
        self.base_consts()
        k(f"s_lshr_b32 s{S_T0}, s{S_WI}, 5")
        k(f"s_and_b32 s{S_T1}, s{S_WI}, 31")
        k(f"s_cmp_ge_u32 s{S_T1}, 24")
        k("s_cbranch_scc1 L_second")
        k(f"s_mul_i32 s{S_G}, s{S_T0}, 24")
        k(f"s_add_u32 s{S_G}, s{S_G}, s{S_T1}")
        k(f"s_mul_i32 s{S_CG}, s{S_G}, 171")
        k(f"s_lshr_b32 s{S_CG}, s{S_CG}, 9")
        k(f"s_mul_i32 s{S_T0}, s{S_CG}, 3")
        k(f"s_sub_u32 s{S_TG}, s{S_G}, s{S_T0}")
        self.phase_aqkv(ch, claim)
        self.mark(2)
        self.arrive(DBG, 4 * DBG_BARA)
        self.phase_ao()
        self.mark(10)
        k("s_endpgm")
        k("L_second:")
        k(f"s_lshl_b32 s{S_G}, s{S_T0}, 3")
        k(f"s_add_u32 s{S_G}, s{S_G}, s{S_T1}")
        k(f"s_sub_u32 s{S_G}, s{S_G}, 24")
        k(f"s_lshr_b32 s{S_CG}, s{S_G}, 2")
        k(f"s_and_b32 s{S_TG}, s{S_G}, 3")
        self.phase_bqkv(ch, claim)
        self.mark(4)
        self.arrive(DBG, 4 * DBG_BAR1)
        self.poll(DBG, 4 * DBG_BAR1, 48)
        self.mark(5)
        self.phase_battn()
        self.mark(6)
        self.arrive(DBG, 4 * DBG_BAR2)
        self.phase_bout_load()
        self.poll(DBG, 4 * DBG_BAR2, 48)
        self.mark(7)
        self.phase_bout()
        self.mark(8)
```

```python
import sys
from asmlib import *
from layout import *
import chain as C
from chain import Chain, S_A, S_H, S_W, S_STEP, S_SPIN, S_T0, S_T1, S_T2, S_T3, S_TA, WS, OOB
import worker as W
from worker import Worker, S_WI, S_DBG, S_OUT, DBG

NAME = "concat_heads__memory_aug_recurrent_mem_tr__sliding_block__prompt"
SPIN = 1 << 16
S_ROLE = 3


def build(name=NAME + "_kernel", stamps=None, fakexcc=False, timing=False, **opt):
    copt = dict(x4=1, d1=32, d2=256, natt=1, nset=3)
    copt.update(opt)
    k = Asm()
    ch = Chain(k, stamps=stamps, **copt)
    wk = Worker(k, **opt)
    k(f"{name}:")
    k("s_cmp_ge_u32 s2, 256")
    k("s_cbranch_scc1 L_exit")
    if timing:
        k("s_memrealtime s[78:79]")
    k("s_load_dwordx2 s[4:5], s[0:1], 96")
    k(f"s_load_dwordx2 {sr(S_DBG, 2)}, s[0:1], 88")
    k("v_lshrrev_b32 v1, 6, v0")
    k(f"v_readfirstlane_b32 s{S_W}, v1")
    k("v_and_b32 v0, 63, v0")
    k(f"s_mov_b32 s{S_SPIN}, {SPIN}")
    k(f"s_getreg_b32 s{S_T2}, hwreg(HW_REG_XCC_ID)")
    if fakexcc:
        k(f"s_lshr_b32 s{S_T2}, s{S_T2}, 1")
        k(f"s_lshl_b32 s{S_T2}, s{S_T2}, 1")
    k(f"s_and_b32 s{S_T2}, s{S_T2}, 7")
    k("s_waitcnt lgkmcnt(0)")
    k(f"s_mov_b32 s6, {WS_BYTES}")
    k("s_mov_b32 s7, 0x20000")
    k(f"s_mov_b32 s{S_DBG + 2}, 256")
    k(f"s_mov_b32 s{S_DBG + 3}, 0x20000")
    k(f"s_lshl_b32 s{S_ROLE}, s{S_T2}, 5")
    k(f"s_lshr_b32 s{S_T0}, s2, 3")
    if opt.get("fakeid"):
        k(f"s_and_b32 s{S_T0}, s{S_T0}, 28")
    k(f"s_add_u32 s{S_ROLE}, s{S_ROLE}, s{S_T0}")

    def registered(v, dst):
        k(f"v_readlane_b32 s{dst}, v{v}, {DBG_OVF}")
        for x in range(8):
            k(f"v_readlane_b32 s{S_T0}, v{v}, {dbg_word(x)}")
            k(f"s_bcnt1_i32_b32 s{S_T0}, s{S_T0}")
            k(f"s_add_u32 s{dst}, s{dst}, s{S_T0}")

    def claim(va, vb, lds):
        done, wait, tr, got, ovf, lp, sel, have = (k.label(x) for x in ("cdone", "cwait", "ctry", "cgot", "covf", "clp", "csel", "chave"))
        k("s_bitcmp1_b32 s2, 31")
        k(f"s_cbranch_scc1 {done}")
        k(f"v_mov_b32 v{vb}, 0")
        k(f"s_cmp_lg_u32 s{S_W}, 0")
        k(f"s_cbranch_scc1 {wait}")
        k(f"s_lshr_b32 s{S_T2}, s{S_ROLE}, 5")
        k(f"s_lshr_b32 s{S_T0}, {(1 << XA) | (1 << XB)}, s{S_T2}")
        k(f"s_and_b32 s{S_T0}, s{S_T0}, 1")
        k(f"s_lshl_b32 s{S_T0}, s{S_T0}, 5")
        k(f"s_add_u32 s{S_T2}, s{S_T2}, s{S_T0}")
        k(f"s_lshl_b32 s{S_T2}, s{S_T2}, 2")
        k(f"s_and_b32 s{S_T1}, s{S_ROLE}, 31")
        k(f"{tr}:")
        k(f"s_lshl_b32 s{S_T0}, 1, s{S_T1}")
        k(f"v_mov_b32 v{va}, s{S_T0}")
        k("s_mov_b64 exec, 1")
        k(f"buffer_atomic_or v{va}, v{vb}, {DBG}, s{S_T2} offen sc0")
        k("s_waitcnt vmcnt(0)")
        k(f"v_readfirstlane_b32 s{S_T3}, v{va}")
        k("s_mov_b64 exec, -1")
        k(f"s_and_b32 s{S_T0}, s{S_T0}, s{S_T3}")
        k(f"s_cbranch_scc0 {got}")
        k(f"s_cmp_eq_u32 s{S_T3}, -1")
        k(f"s_cbranch_scc1 {ovf}")
        k(f"s_mul_i32 s{S_T1}, s2, 37")
        k(f"s_lshr_b32 s{S_T1}, s{S_T1}, 3")
        k(f"s_and_b32 s{S_T1}, s{S_T1}, 31")
        k(f"s_mov_b32 vcc_lo, s{S_T3}")
        k(f"s_mov_b32 vcc_hi, s{S_T3}")
        k(f"s_lshr_b64 vcc, vcc, s{S_T1}")
        k(f"s_ff0_i32_b32 s{S_T0}, vcc_lo")
        k(f"s_add_u32 s{S_T1}, s{S_T1}, s{S_T0}")
        k(f"s_and_b32 s{S_T1}, s{S_T1}, 31")
        k(f"s_branch {tr}")
        k(f"{got}:")
        k(f"s_and_b32 s{S_T0}, s{S_ROLE}, 0xe0")
        k(f"s_add_u32 s{S_T1}, s{S_T1}, s{S_T0}")
        k(f"s_branch {have}")
        k(f"{ovf}:")
        k(f"v_mov_b32 v{va}, 1")
        k("s_mov_b64 exec, 1")
        k(f"buffer_atomic_add v{va}, v{vb}, {DBG}, {4 * DBG_OVF} offen sc0")
        k("s_waitcnt vmcnt(0)")
        k(f"v_readfirstlane_b32 s{S_T2}, v{va}")
        k("s_mov_b64 exec, -1")
        k(f"v_lshlrev_b32 v{vb}, 2, v0")
        k(f"{lp}:")
        wk.spin()
        k(f"buffer_load_dword v{va}, v{vb}, {DBG}, 0 offen sc1")
        k("s_waitcnt vmcnt(0)")
        registered(va, S_T1)
        k(f"s_cmp_lt_u32 s{S_T1}, 256")
        k(f"s_cbranch_scc1 {lp}")
        for x in range(8):
            k(f"v_readlane_b32 s{S_T3}, v{va}, {dbg_word(x)}")
            k(f"s_mov_b32 s{S_T1}, {32 * x}")
            k(f"s_bcnt0_i32_b32 s{S_T0}, s{S_T3}")
            k(f"s_cmp_lt_u32 s{S_T2}, s{S_T0}")
            k(f"s_cbranch_scc1 {sel}")
            k(f"s_sub_u32 s{S_T2}, s{S_T2}, s{S_T0}")
        k("s_branch L_abort")
        k(f"{sel}:")
        k(f"s_ff0_i32_b32 s{S_T0}, s{S_T3}")
        k(f"s_bitset1_b32 s{S_T3}, s{S_T0}")
        k(f"s_sub_u32 s{S_T2}, s{S_T2}, 1")
        k(f"s_cbranch_scc0 {sel}")
        k(f"s_add_u32 s{S_T1}, s{S_T1}, s{S_T0}")
        k(f"{have}:")
        k(f"v_mov_b32 v{va}, s{S_T1}")
        k(f"v_mov_b32 v{vb}, {lds}")
        k(f"ds_write_b32 v{vb}, v{va}")
        k("s_waitcnt lgkmcnt(0)")
        k(f"{wait}:")
        k("s_barrier")
        k(f"v_mov_b32 v{vb}, {lds}")
        k(f"ds_read_b32 v{va}, v{vb}")
        k("s_waitcnt lgkmcnt(0)")
        k(f"v_readfirstlane_b32 s{S_T0}, v{va}")
        k("s_bitset1_b32 s2, 31")
        k(f"s_and_b32 s{S_T0}, s{S_T0}, 255")
        k(f"s_cmp_eq_u32 s{S_T0}, s{S_ROLE}")
        k(f"s_cbranch_scc1 {done}")
        k(f"s_mov_b32 s{S_ROLE}, s{S_T0}")
        k("s_waitcnt vmcnt(0)")
        k("s_barrier")
        k("s_branch L_dispatch")
        k(f"{done}:")

    k("L_dispatch:")
    k(f"s_lshr_b32 s{S_T0}, s{S_ROLE}, 5")
    k(f"s_cmp_eq_u32 s{S_T0}, {XA}")
    k("s_cbranch_scc1 L_chain")
    k(f"s_cmp_eq_u32 s{S_T0}, {XB}")
    k("s_cbranch_scc1 L_chain")
    k("s_branch L_worker")
    k("L_exit:")
    k("s_endpgm")

    k("L_chain:")
    k(f"s_cmp_eq_u32 s{S_T0}, {XB}")
    k(f"s_cselect_b32 s{S_A}, 1, 0")
    k(f"s_and_b32 s{S_H}, s{S_ROLE}, 31")
    k("s_load_dwordx2 s[88:89], s[0:1], 16")
    k("s_load_dwordx2 s[92:93], s[0:1], 24")
    k("s_load_dwordx2 s[96:97], s[0:1], 32")
    k("s_load_dwordx2 s[80:81], s[0:1], 40")
    k(f"s_mov_b32 s{S_STEP}, 0")
    if stamps:
        k(f"s_mov_b32 s{C.S_STAMP + 4}, 0")
        k(f"s_mov_b64 {sr(C.S_STAMP, 2)}, 0")
        k(f"s_mov_b64 {sr(C.S_STAMP + 2, 2)}, 0")
    k("s_waitcnt lgkmcnt(0)")
    for s in (88, 92, 96, 80):
        k(f"s_mov_b32 s{s + 2}, {640 * 8192}")
        k(f"s_mov_b32 s{s + 3}, 0x20000")
    if timing:
        k("s_memrealtime s[100:101]")
    ch.load_weights(88, 92, 96, 80, lambda: claim(60, 61, C.LDS_JUNK))
    if timing:
        k("s_memrealtime s[98:99]")
    k("s_load_dwordx2 s[88:89], s[0:1], 8")
    k("s_waitcnt lgkmcnt(0)")
    k("s_mov_b32 s90, 10240")
    k("s_mov_b32 s91, 0x20000")
    ch.mem0_piece(88)
    k(f"v_lshrrev_b32 v15, 2, v{C.V_L16}")
    k("L_hs:")
    ch.spin()
    k(f"buffer_load_dword v62, v15, {DBG}, 0 offen sc1")
    k("s_waitcnt vmcnt(0)")
    k(f"v_readlane_b32 s77, v62, {DBG_INIT}")
    k(f"s_and_b32 s{S_T0}, s77, 0xffff")
    k(f"s_cmp_lt_u32 s{S_T0}, 192")
    k("s_cbranch_scc1 L_hs")
    registered(62, S_T1)
    k(f"s_cmp_lt_u32 s{S_T1}, 256")
    k("s_cbranch_scc1 L_hs")
    k("s_lshr_b32 s77, s77, 16")
    k(f"s_and_b32 s77, s77, 1")
    if opt.get("pol"):
        k("s_xor_b32 s77, s77, 1")
    ch.remote_offsets(77)
    k(f"v_readlane_b32 s{S_T0}, v62, {dbg_word(XA)}")
    k(f"v_readlane_b32 s{S_T1}, v62, {dbg_word(XB)}")
    k(f"s_cmp_eq_u32 s{S_A}, 0")
    k(f"s_cselect_b32 s77, s{S_T0}, s{S_T1}")
    k(f"s_cmp_eq_u32 s{C.S_RED}, 0")
    k("s_cbranch_scc1 L_np")
    ch.piece_store(80, C.S_MLW, " sc1")
    ch.piece_store(80, C.S_MRW, " sc1")
    k("L_np:")
    k(f"s_mov_b32 s{S_T3}, 0")
    ch.ready_poll(60, 61)
    ch.late_consts()
    ch.pre_step()
    if timing:
        k("s_memrealtime s[80:81]")
        k("s_memtime s[86:87]")
        k(f"s_mov_b32 s{S_SPIN}, {SPIN}")
    k("s_waitcnt lgkmcnt(0)")
    k("s_cmp_lg_u32 s77, -1")
    k("s_cbranch_scc1 L_safe")
    k(f"s_cmp_lg_u32 s{S_W}, 3")
    ch.loop("f", "")
    k("s_branch L_cend")
    k("L_safe:")
    k(f"s_cmp_lg_u32 s{S_W}, 3")
    ch.names = []
    ch.loop("s", " sc1")
    k("L_cend:")
    if timing:
        ch.write_stamps()
        k("s_memrealtime s[94:95]")
        k("s_memtime s[92:93]")
        k("s_waitcnt lgkmcnt(0)")
        k("s_sub_u32 s86, s92, s86")
        for i, s in enumerate((78, 98, 80, 94, 100, 86)):
            k(f"v_mov_b32 v{64 + i}, s{s}")
        k(f"s_lshl_b32 s{S_T0}, s{S_ROLE}, 6")
        k(f"s_add_u32 s{S_T0}, s{S_T0}, {WS_STAMP + 65536}")
        k("s_mov_b64 exec, 1")
        k(f"buffer_store_dwordx4 v[64:67], v{C.V_L16}, {WS}, s{S_T0} offen")
        k(f"buffer_store_dwordx2 v[68:69], v{C.V_L16}, {WS}, s{S_T0} offen offset:16")
    k("L_abort:")
    k("s_endpgm")
    k("L_cabort:")
    if timing:
        k(f"s_add_u32 s{C.S_STAMP + 4}, s{S_STEP}, 0xdead0000")
        ch.write_stamps()
    k("s_endpgm")

    k("L_worker:")
    k(f"s_cmp_eq_u32 s{S_T0}, 6")
    k(f"s_cselect_b32 s{S_T1}, 32, 0")
    k(f"s_sub_u32 s{S_WI}, s{S_ROLE}, s{S_T1}")
    wk.timing = timing
    wk.program(ch, lambda: claim(W.V_T0, W.V_T1, 163836))
    k("s_endpgm")
    k.fix_hazards(verbose="-v" in sys.argv)
    if "-e" in sys.argv:
        i0 = [i for i, it in enumerate(k.items) if it == ("l", "L_step_f")][0]
        i1 = [i for i, it in enumerate(k.items) if it == ("l", "L_nr_f")][0]
        t, marks = estimate(k.items[i0:i1], verbose="-vv" in sys.argv)
        print(t, marks)
    if opt.get("at") is not None:
        i0 = [i for i, it in enumerate(k.items) if it == ("t", "; @" + stamps[0])][0] + 1
        n, i = 0, i0
        while n < opt["at"]:
            i += 1
            if k.items[i][0] == "i":
                n += 1
        build.last = k.items[i][1].text
        k.items.insert(i + 1, ("i", Ins(f"s_memtime {sr(C.S_STAMP + 2, 2)}")))
    head = f"""; Recurrent-memory transformer block and sliding-window attention block in one persistent launch.
; @launch grid=(256,1,1) block=(256,1,1) lds=163840
.amdgcn_target "amdgcn-amd-amdhsa--gfx950"
.text
.globl {name}
.p2align 8
.type {name},@function
"""
    tail = f""".section .rodata,"a"
.p2align 6
.amdhsa_kernel {name}
  .amdhsa_next_free_vgpr 512
  .amdhsa_next_free_sgpr 102
  .amdhsa_accum_offset 256
  .amdhsa_group_segment_fixed_size 0
  .amdhsa_kernarg_size 104
  .amdhsa_user_sgpr_count 2
  .amdhsa_user_sgpr_kernarg_segment_ptr 1
  .amdhsa_system_sgpr_workgroup_id_x 1
  .amdhsa_float_denorm_mode_32 3
.end_amdhsa_kernel
"""
    return head + k.text() + tail, ch.names


if __name__ == "__main__":
    txt, _ = build()
    open(f"cdna_kernels/{NAME}.s", "w").write(txt)
    print(len(txt), "bytes")
```
